```python
import torch

def _softmax(x, axis=-1):
    return torch.softmax(x, dim=axis)
def _gelu(x):
    return torch.nn.functional.gelu(x, approximate="tanh")
def _silu(x):
    return torch.nn.functional.silu(x)
def _sigmoid(x):
    return torch.sigmoid(x)
def _layernorm(x, axis=-1, eps=1e-5):
    m = x.mean(dim=axis, keepdim=True)
    v = x.var(dim=axis, keepdim=True, unbiased=False)
    return (x - m) / torch.sqrt(v + eps)
def _scatter_add(tgt, idx, src, axis=0):
    return tgt.clone().index_add_(axis, idx, src)
def _segment_sum(src, seg, n):
    out = torch.zeros((n,) + src.shape[1:], dtype=src.dtype)
    return out.index_add_(0, seg, src)
def _pad(x, pw):
    flat = tuple(v for pair in reversed(pw) for v in pair)
    return torch.nn.functional.pad(x, flat)

kernel_name = 'sequential_preLN__sliding_block_cached__dense_activation_squared_relu__decode'

def setup_inputs():

    _w = (lambda a: (lambda t: t.to(torch.bfloat16) if t.is_floating_point() else t)(torch.as_tensor(a)))
    def _A_setup():
        B, Sq, D = 1, 1, 512
        Hq, Hkv, Sk, Dh = 32, 8, 65536, 128
        assert Hq % Hkv == 0, (Hq, Hkv)
        return {
            "x": _w((lambda *s: torch.randn(*s, dtype=torch.bfloat16) * 0.05)(B, Sq, D)),
            "k_cache": _w((lambda *s: torch.randn(*s, dtype=torch.bfloat16) * 3.2)(B, Hkv, Sk, Dh)),
            "v_cache": _w((lambda *s: torch.randn(*s, dtype=torch.bfloat16) * 0.4)(B, Hkv, Sk, Dh)),
            "wq": _w((lambda *s: torch.randn(*s, dtype=torch.bfloat16) * 3.2)(D, Hq * Dh) * (D ** -0.5)),
            "wo": _w((lambda *s: torch.randn(*s, dtype=torch.bfloat16) * 0.4)(Hq * Dh, D) * ((Hq * Dh) ** -0.5)),
        }
    _A_in = _A_setup()

    def _B_setup():
        B, S, D, F = 1, 1, 512, 1792
        return {
            "x": _w((lambda *s: torch.randn(*s, dtype=torch.bfloat16) * 0.05)(B, S, D)),
            "w1": _w((lambda *s: torch.randn(*s, dtype=torch.bfloat16) * 0.05)(D, F)),
            "b1": _w((lambda *s: torch.randn(*s, dtype=torch.bfloat16) * 0.8)(F)),
            "w2": _w((lambda *s: torch.randn(*s, dtype=torch.bfloat16) * 0.05)(F, D)),
            "b2": _w((lambda *s: torch.randn(*s, dtype=torch.bfloat16) * 1.6)(D)),
        }
    _B_in = _B_setup()

    return {
        "A_x": _A_in["x"],
        "A_k_cache": _A_in["k_cache"],
        "A_v_cache": _A_in["v_cache"],
        "A_wq": _A_in["wq"],
        "A_wo": _A_in["wo"],
        "B_x": _B_in["x"],
        "B_w1": _B_in["w1"],
        "B_b1": _B_in["b1"],
        "B_w2": _B_in["w2"],
        "B_b2": _B_in["b2"],
    }

def reference(A_x, A_k_cache, A_v_cache, A_wq, A_wo, B_x, B_w1, B_b1, B_w2, B_b2):
    def _A_ref(x, k_cache, v_cache, wq, wo):
        B, Sq, D = x.shape
        Hq, Dh = 32, 128
        Hkv, Sk = k_cache.shape[1], k_cache.shape[2]
        W = min(4096, max(256, Sk // 4))
        rep = Hq // Hkv
        q = (lambda x, *d: x.permute(*d))((x @ wq).reshape(B, Sq, Hq, Dh), 0, 2, 1, 3)
        k = (lambda x, n, axis: torch.repeat_interleave(x, n, dim=axis))(k_cache[:, :, Sk - W:, :], rep, axis=1)
        v = (lambda x, n, axis: torch.repeat_interleave(x, n, dim=axis))(v_cache[:, :, Sk - W:, :], rep, axis=1)
        scores = torch.einsum("bhqd,bhkd->bhqk", q, k) * (Dh ** -0.5)
        p = _softmax(scores, axis=-1)
        o = torch.einsum("bhqk,bhkd->bhqd", p, v)
        return (lambda x, *d: x.permute(*d))(o, 0, 2, 1, 3).reshape(B, Sq, Hq * Dh) @ wo

    def _B_ref(x, w1, b1, w2, b2):
        h = torch.einsum("bsd,df->bsf", x, w1) + b1
        zero = torch.zeros_like(h)
        r = torch.where(h > zero, h, zero)
        h = r * r
        out = torch.einsum("bsf,fd->bsd", h, w2) + b2
        return out

    x = A_x
    h = x + _A_ref(_layernorm(x, axis=-1), A_k_cache, A_v_cache, A_wq, A_wo)
    h2 = h + _B_ref(_layernorm(h, axis=-1), B_w1, B_b1, B_w2, B_b2)
    return h2
```

```python
import re

TRANS = ("v_exp_f32", "v_log_f32", "v_rcp_f32", "v_rsq_f32", "v_sqrt_f32", "v_sin_f32", "v_cos_f32")

def regs_of(tok):
    tok = tok.strip()
    tok = tok.lstrip("-")
    m = re.fullmatch(r"abs\((.*)\)|\|(.*)\|", tok)
    if m:
        tok = m.group(1) or m.group(2)
    m = re.fullmatch(r"([vs])(\d+)", tok)
    if m:
        return {(m.group(1), int(m.group(2)))}
    m = re.fullmatch(r"([vs])\[(\d+):(\d+)\]", tok)
    if m:
        return {(m.group(1), i) for i in range(int(m.group(2)), int(m.group(3)) + 1)}
    if tok in ("vcc", "vcc_lo", "vcc_hi"):
        return {("vcc", 0)}
    if tok in ("exec", "exec_lo", "exec_hi"):
        return {("exec", 0)}
    return set()

class Ins:
    def __init__(self, text):
        self.text = text
        t = text.split(";")[0].strip()
        self.is_label = t.endswith(":")
        self.is_dir = t.startswith(".")
        self.mn = t.split()[0] if t else ""
        rest = t[len(self.mn):].strip()
        ops, depth, cur = [], 0, ""
        for ch in rest:
            if ch in "[(": depth += 1
            if ch in "])": depth -= 1
            if ch == "," and depth == 0:
                ops.append(cur.strip()); cur = ""
            else:
                cur += ch
        if cur.strip(): ops.append(cur.strip())
        self.mods = ""
        if ops:
            parts = ops[-1].split(None, 1)
            ops[-1] = parts[0]
            self.mods = parts[1] if len(parts) > 1 else ""
        self.ops = ops
        mn = self.mn
        self.mfma = mn.startswith("v_mfma")
        self.valu = mn.startswith("v_") and not self.mfma
        self.trans = any(mn.startswith(x) for x in TRANS)
        self.dpp = "_dpp" in mn
        self.permlane = mn.startswith("v_permlane")
        self.lane_read = mn.startswith("v_readlane") or mn.startswith("v_readfirstlane")
        self.vmem = mn.startswith(("global_", "buffer_", "flat_"))
        self.ds = mn.startswith("ds_")
        self.dot = mn.startswith("v_dot")
        self.defs, self.uses = set(), set()
        R = [regs_of(o) for o in ops]
        if self.valu or self.mfma:
            self.defs = set(R[0]) if R else set()
            for r in R[1:]: self.uses |= r
            if self.permlane:
                self.defs |= R[1]; self.uses |= R[0]
            if mn.startswith(("v_fmac", "v_dot2c", "v_writelane")) or self.dpp:
                self.uses |= R[0]
            if mn.startswith(("v_add_co", "v_addc_co", "v_sub_co")):
                self.defs |= R[1]
            if mn.startswith("v_cmpx"):
                self.defs |= {("exec", 0)}
            if mn.startswith("v_cndmask") and len(ops) == 3:
                self.uses |= {("vcc", 0)}
        elif self.vmem:
            if "load" in mn and "lds" not in mn and " lds" not in " " + self.mods:
                self.defs = set(R[0])
                for r in R[1:]: self.uses |= r
            else:
                for r in R: self.uses |= r
        elif self.ds:
            if mn.startswith(("ds_read", "ds_bpermute", "ds_permute", "ds_swizzle")):
                self.defs = set(R[0])
                for r in R[1:]: self.uses |= r
            else:
                for r in R: self.uses |= r
        self.states = 1
        if mn == "s_nop":
            self.states = int(ops[0]) + 1
        if self.is_label or self.is_dir or not mn:
            self.states = 0
        self.wide_store_data = set()
        if self.vmem and "store" in mn and ("x4" in mn or "x3" in mn):
            self.wide_store_data = set(R[1]) if mn.startswith("global") else set(R[0])
        if self.mfma:
            self.passes = 2 if "4x4x4" in mn else (8 if "32x32" in mn else 4)
            self.srcc = R[3]; self.srcab = R[1] | R[2]

def need(p, c):
    n = 0
    vdefs = {r for r in p.defs if r[0] == "v"}
    sdefs = {r for r in p.defs if r[0] in ("s", "vcc")}
    if p.valu:
        if c.dpp and c.ops and vdefs & (regs_of(c.ops[1]) | regs_of(c.ops[0])): n = max(n, 2)
        if c.permlane and vdefs & c.uses: n = max(n, 2)
        if c.lane_read and vdefs & c.uses: n = max(n, 1)
        if p.trans and c.valu and not c.trans and vdefs & c.uses: n = max(n, 1)
        if p.trans and (c.vmem or c.ds) and vdefs & c.uses: n = max(n, 1)
        if c.mfma and vdefs & c.uses: n = max(n, 2)
        if (c.valu) and sdefs & c.uses: n = max(n, 4 if (c.lane_read or c.mn.startswith("v_writelane")) else 2)
        if c.vmem and sdefs & c.uses: n = max(n, 5)
        if ("exec", 0) in p.defs and (c.dpp or c.mfma or c.permlane or c.lane_read): n = max(n, 5)
        if p.dot and c.valu and vdefs & (c.uses | c.defs) and not (c.mn == p.mn and not (vdefs & (regs_of(c.ops[1]) | regs_of(c.ops[2])))): n = max(n, 3)
        if p.dot and (c.mfma or c.vmem or c.ds) and vdefs & c.uses: n = max(n, 3)
    if p.mfma:
        far = {2: 5, 4: 8, 8: 12}[p.passes]
        if c.mfma:
            if vdefs & c.srcab: n = max(n, far)
            if vdefs & c.srcc:
                if vdefs == c.srcc and p.passes == c.passes: n = max(n, 2 if p.passes == 2 else 0)
                else: n = max(n, {2: 4, 4: 6, 8: 10}[p.passes])
            elif vdefs & c.defs: n = max(n, far)
        elif (c.valu or c.vmem or c.ds) and vdefs & (c.uses | c.defs): n = max(n, far)
        if c.valu and p.srcc & c.defs: n = max(n, {2: 1, 4: 3, 8: 7}[p.passes])
    if p.wide_store_data and (c.valu or c.mfma or c.vmem or c.ds) and p.wide_store_data & c.defs: n = max(n, 2)
    return n

class Asm:
    def __init__(self):
        self.ins = []
        self.nops = 0
    def __call__(self, text):
        for line in text.strip().split("\n"):
            line = line.strip()
            if not line or line.startswith(";"): continue
            c = Ins(line)
            if c.states and c.mn != "s_nop":
                dist, req = 0, 0
                for p in reversed(self.ins):
                    if dist >= 12: break
                    if p.mn in ("s_endpgm", "s_branch"): break
                    r = need(p, c) - dist
                    req = max(req, r)
                    dist += p.states
                if req > 0:
                    self.ins.append(Ins(f"s_nop {req-1}"))
                    self.nops += req
            self.ins.append(c)
    def text(self):
        out = []
        for i in self.ins:
            out.append(i.text if (i.is_label or i.is_dir) else "    " + i.text)
        return "\n".join(out) + "\n"
```

```python
import sys
from asmlib import Asm

NAME = "sequential_preLN__sliding_block_cached__dense_activation_squared_relu__decode"

DEF = dict(stamps=0, nv1=4, b0wait=4, ldf="nt", force_slow=0, pad=0)

WS_H1, WS_XC, WS_H2, WS_H3, WS_H3B, WS_ST, WS_H4, WS_DBG = 0x1000, 0x11000, 0x20000, 0xA0000, 0xB0000, 0x130000, 0x140000, 0x200000
L_Q, L_Z, L_M, L_L, L_LSE, L_MODE, L_PV, L_WO = 0, 1024, 1280, 1344, 1408, 1424, 2048, 10240
LDS_BYTES = 12288
TAGC = 0x6D2B79F5
LOG2E = 0x3FB8AA3B
SCALE = 0x3DB504F3
EPS = 0x3727C5AC

DPP_ALL = "row_mask:0xf bank_mask:0xf"

def gen(**kw):
    P = dict(DEF); P.update(kw)
    ldf = P["ldf"]
    a = Asm()
    nst = [0]
    def stamp(i):
        if P["stamps"]:
            a(f"s_memrealtime s[{60+2*i}:{61+2*i}]")
    def rbf(dst, src):
        a(f"v_cvt_pk_bf16_f32 {dst}, {src}, {src}")
        a(f"v_lshlrev_b32 {dst}, 16, {dst}")
    def dpp(op, d, s0, s1, ctl, bank=0xf):
        a(f"{op}_dpp {d}, {s0}, {s1} {ctl} row_mask:0xf bank_mask:{bank:#x}")
    def row_allreduce(op, r):
        for ctl in ("quad_perm:[1,0,3,2]", "quad_perm:[2,3,0,1]", "row_half_mirror", "row_mirror"):
            dpp(op, r, r, r, ctl)
    def cross_rows(op, r, t):
        for sw in ("v_permlane16_swap_b32", "v_permlane32_swap_b32"):
            a(f"v_mov_b32 {t}, {r}")
            a(f"{sw} {t}, {r}")
            a(f"{op} {r}, {r}, {t}")
    def tagcheck(groups, t0, t1):
        first = True
        if len(groups) == 1:
            g = groups[0]
            a(f"v_xor_b32 v{t0}, s32, v{g}")
            for i in range(1, 4):
                a(f"v_bitop3_b32 v{t0}, v{g+i}, s{32+i}, v{t0} bitop3:0xbe")
        else:
            for k in range(0, len(groups), 2):
                g0, g1 = groups[k], groups[k + 1]
                for i in range(0, 4, 2):
                    if first:
                        a(f"v_bitop3_b32 v{t0}, v{g0+i}, v{g1+i}, s{32+i} bitop3:0x7e")
                        a(f"v_bitop3_b32 v{t1}, v{g0+i+1}, v{g1+i+1}, s{33+i} bitop3:0x7e")
                        a(f"v_or_b32 v{t0}, v{t0}, v{t1}")
                        first = False
                    else:
                        a(f"v_bitop3_b32 v{t1}, v{g0+i}, v{g1+i}, s{32+i} bitop3:0x7e")
                        a(f"v_bitop3_b32 v{t1+1}, v{g0+i+1}, v{g1+i+1}, s{33+i} bitop3:0x7e")
                        a(f"v_or3_b32 v{t0}, v{t0}, v{t1}, v{t1+1}")
        a(f"v_and_b32 v{t0}, 0xff, v{t0}")
        a(f"v_cmp_ne_u32 vcc, 0, v{t0}")
    def poll_head(lbl):
        a(f"{lbl}:")
        a("s_sub_u32 s36, s36, 1")
        a("s_cbranch_scc1 L_end")
    def store2(instr):
        n = nst[0]; nst[0] += 1
        a("s_cmp_eq_u32 s37, 0")
        a(f"s_cbranch_scc1 L_st{n}_slow")
        a(instr)
        a(f"s_branch L_st{n}_done")
        a(f"L_st{n}_slow:")
        a(instr + " sc1")
        a(f"L_st{n}_done:")
    def wsbase(dst, const, terms):
        a(f"s_mov_b32 s38, {const:#x}")
        for reg, sh in terms:
            a(f"s_lshl_b32 s39, {reg}, {sh}")
            a("s_add_u32 s38, s38, s39")
        a(f"s_add_u32 s{dst}, s28, s38")
        a(f"s_addc_u32 s{dst+1}, s29, 0")
    def masks32(m):
        a("v_and_b32 v2, 1, v1")
        a("v_lshlrev_b32 v2, 4, v2")
        a("v_mov_b32 v3, 0xffff")
        a("v_lshlrev_b32 v2, v2, v3")
        a("v_bfe_u32 v3, v1, 1, 2")
        for q in range(4):
            a(f"v_cmp_eq_u32 vcc, {q}, v3")
            a(f"v_cndmask_b32 v{m+q}, 0, v2, vcc")

    stamp(0)
    a("s_load_dwordx16 s[4:19], s[0:1], 0")
    a("s_load_dwordx8 s[20:27], s[0:1], 64")
    a("s_load_dwordx2 s[28:29], s[0:1], 96")
    a("s_cmp_ge_u32 s2, 256")
    a("s_cbranch_scc1 L_exit")
    a("v_lshrrev_b32 v2, 6, v0")
    a("v_and_b32 v1, 63, v0")
    a("v_readfirstlane_b32 s3, v2")
    a("s_and_b32 s30, s2, 7")
    a("s_lshr_b32 s31, s2, 3")
    a("s_mov_b32 s36, 0x20000")
    a("s_cmp_ge_u32 s3, 4")
    a("s_cbranch_scc1 L_A")
    a("s_cmp_eq_u32 s3, 0")
    a("s_cbranch_scc1 L_Q")
    a("s_getpc_b64 s[40:41]")
    a("s_and_b32 s40, s40, 0xffffff00")
    a("s_lshl_b32 s38, s31, 7")
    a("s_lshl_b32 s39, s3, 12")
    a("s_add_u32 s38, s38, s39")
    a("v_mov_b32 v2, s38")
    a("global_load_dword v127, v2, s[40:41] offset:-4096")
    a("s_waitcnt lgkmcnt(0)")
    a("s_load_dword s32, s[28:29], 0")
    a("s_barrier")
    a("s_branch L_W")
    a("L_Q:")
    a("s_movk_i32 s56, 0x4000")
    a("s_mov_b32 s40, 0")
    for t in range(1, 16):
        a(f"s_add_u32 s{40+t}, s{39+t}, s56")
    a("v_lshrrev_b32 v2, 4, v1")
    a("v_lshlrev_b32 v2, 18, v2")
    a("v_bfe_u32 v3, v1, 3, 1")
    a("v_lshl_add_u32 v2, v3, 13, v2")
    a("v_and_b32 v3, 7, v1")
    a("v_lshl_add_u32 v2, v3, 4, v2")
    a("s_lshr_b32 s57, s31, 3")
    a("s_and_b32 s58, s31, 7")
    a("s_lshl_b32 s38, s57, 20")
    a("s_lshl_b32 s39, s30, 10")
    a("s_add_u32 s38, s38, s39")
    a("s_lshl_b32 s39, s58, 7")
    a("s_add_u32 s38, s38, s39")
    a("s_lshl_b32 s39, s57, 8")
    a("v_lshlrev_b32 v3, 4, v1")
    a("v_lshl_add_u32 v9, v1, 2, s39")
    a("s_waitcnt lgkmcnt(0)")
    a("s_add_u32 s12, s10, s38")
    a("s_addc_u32 s13, s11, 0")
    a(f"s_mov_b32 s14, {127*8192+128}")
    a("s_mov_b32 s15, 0x20000")
    a("global_load_dwordx4 v[4:7], v3, s[4:5]")
    a("global_load_dword v8, v9, s[4:5]")
    for t in range(16):
        a(f"buffer_load_dwordx4 v[{64+4*t}:{67+4*t}], v2, s[12:15], s{40+t} offen {ldf}")
    a("s_load_dword s32, s[28:29], 0")
    a("s_load_dwordx2 s[42:43], s[0:1], 32")
    a("s_barrier")
    a("s_branch L_Q1")
    a("L_A:")
    a("v_and_b32 v2, 1, v1")
    a("v_lshlrev_b32 v2, 4, v2")
    a("v_bfe_u32 v3, v1, 1, 3")
    a("v_lshl_add_u32 v2, v3, 8, v2")
    a("v_lshrrev_b32 v4, 4, v1")
    a("v_lshl_add_u32 v2, v4, 5, v2")
    a("v_and_b32 v3, 15, v1")
    a("v_lshlrev_b32 v3, 4, v3")
    a("v_lshl_add_u32 v3, v4, 9, v3")
    a("s_lshl_b32 s38, s30, 24")
    a("s_lshl_b32 s39, s3, 18")
    a("s_add_u32 s38, s38, s39")
    a("s_lshl_b32 s39, s31, 13")
    a("s_add_u32 s38, s38, s39")
    a(f"s_add_u32 s38, s38, {(15<<20) + 4096 - (4<<18)}")
    a("s_waitcnt lgkmcnt(0)")
    a("s_load_dword s32, s[28:29], 0")
    a("s_add_u32 s6, s6, s38")
    a("s_addc_u32 s7, s7, 0")
    a("s_add_u32 s8, s8, s38")
    a("s_addc_u32 s9, s9, 0")
    a("s_barrier")
    KR = lambda b, v, hf: 32 + 4 * (4 * b + 2 * v + hf)
    VR = lambda b, l: 64 + 4 * (4 * b + l)
    for b in range(2):
        for v in range(2):
            for hf in range(2):
                r = KR(b, v, hf)
                a(f"global_load_dwordx4 v[{r}:{r+3}], v2, s[6:7] offset:{(2*b+v)*2048 + hf*128 - 4096} {ldf}")
    def vload(i):
        b, l = i >> 2, i & 3
        r = VR(b, l)
        a(f"global_load_dwordx4 v[{r}:{r+3}], v3, s[8:9] offset:{b*4096 + (l>>1)*2048 + (l&1)*256 - 4096} {ldf}")
    a("s_nop 0")
    for i in range(P["nv1"]): vload(i)
    stamp(1)
    a("v_and_b32 v5, 1, v1")
    a("v_lshlrev_b32 v6, 4, v5")
    a("v_mov_b32 v7, 0xffff")
    a("v_lshlrev_b32 v6, v6, v7")
    a("v_and_b32 v7, 2, v1")
    a("v_cmp_eq_u32 vcc, 0, v7")
    a("v_cndmask_b32 v10, 0, v6, vcc")
    a("v_cndmask_b32 v11, v6, 0, vcc")
    a("v_bfe_u32 v6, v1, 2, 2")
    a("v_lshlrev_b32 v8, 8, v6")
    a("v_lshl_add_u32 v8, v4, 5, v8")
    a("v_lshl_add_u32 v8, v5, 4, v8")
    a(f"v_mov_b32 v9, {L_Z}")
    a("v_cndmask_b32 v12, v9, v8, vcc")
    a("v_cndmask_b32 v13, v8, v9, vcc")
    a("v_cmp_eq_u32 s[44:45], 1, v5")
    a("v_lshlrev_b32 v14, 4, v6")
    a("s_lshl_b32 s38, s3, 2")
    a("s_sub_u32 s38, s38, 16")
    a("v_add_u32 v15, s38, v14")
    a("v_lshlrev_b32 v16, 2, v6")
    a("v_lshlrev_b32 v17, 2, v4")
    a("v_lshlrev_b32 v18, 4, v1")
    a("s_lshl_b32 s38, s3, 11")
    a(f"s_add_u32 s38, s38, {L_PV - 4*2048}")
    a("v_add_u32 v19, s38, v18")
    a("s_lshl_b32 s38, s3, 10")
    a(f"s_add_u32 s38, s38, {L_PV - 4*1024}")
    a("v_add_u32 v18, s38, v18")
    a("v_lshlrev_b32 v20, 14, v4")
    a("v_lshl_add_u32 v20, v6, 12, v20")
    a("v_and_b32 v7, 3, v1")
    a("v_lshl_add_u32 v20, v7, 4, v20")
    for r in range(24, 32): a(f"v_mov_b32 v{r}, 0")
    a("v_mov_b32 v21, 0")
    a(f"v_mov_b32 v22, {L_MODE}")
    a("s_waitcnt lgkmcnt(0)")
    a(f"s_add_u32 s32, s32, {TAGC:#x}")
    wsbase(46, WS_H2 - 4 * 2048, [("s30", 16), ("s3", 11), ("s31", 6)])
    a(f"s_waitcnt vmcnt({P['b0wait']})")
    a("s_barrier")
    stamp(2)
    for i in range(P["nv1"], 8): vload(i)
    a("s_barrier")
    stamp(3)
    QB = lambda v, hf: 96 + 4 * (2 * v + hf)
    for v in range(2):
        for hf in range(2):
            r = QB(v, hf)
            a(f"ds_read_b128 v[{r}:{r+3}], v{12+v} offset:{hf*128}")
    a("ds_read_b32 v23, v22")
    a("s_waitcnt vmcnt(8) lgkmcnt(0)")
    for v in range(2):
        for hf in range(2):
            for b in range(2):
                k, q, d = KR(b, v, hf), QB(v, hf), 112 + 4 * b
                c = "0" if (v == 0 and hf == 0) else f"v[{d}:{d+3}]"
                a(f"v_mfma_f32_16x16x32_bf16 v[{d}:{d+3}], v[{k}:{k+3}], v[{q}:{q+3}], {c}")
    a("v_readfirstlane_b32 s37, v23")
    for b in range(2):
        d = 112 + 4 * b
        a(f"v_cndmask_b32 v{d+1}, v{d+2}, v{d+1}, s[44:45]")
        a(f"v_cndmask_b32 v{d}, v{d}, v{d+3}, s[44:45]")
    for b in range(2):
        d = 112 + 4 * b
        dpp("v_add_f32", f"v{d}", f"v{d+1}", f"v{d}", "quad_perm:[1,0,3,2]")
    a("v_cvt_pk_bf16_f32 v5, v112, v116")
    a("v_lshlrev_b32 v6, 16, v5")
    a("v_and_b32 v7, 0xffff0000, v5")
    a(f"v_mul_f32 v6, {SCALE:#x}, v6")
    a(f"v_mul_f32 v7, {SCALE:#x}, v7")
    a("v_cvt_pk_bf16_f32 v5, v6, v7")
    a("v_lshlrev_b32 v6, 16, v5")
    a("v_and_b32 v7, 0xffff0000, v5")
    a("v_max_f32 v8, v6, v7")
    dpp("v_max_f32", "v8", "v8", "v8", "quad_perm:[1,0,3,2]")
    dpp("v_max_f32", "v8", "v8", "v8", "quad_perm:[2,3,0,1]")
    cross_rows("v_max_f32", "v8", "v9")
    a("v_sub_f32 v6, v6, v8")
    a("v_sub_f32 v7, v7, v8")
    a(f"v_mul_f32 v6, {LOG2E:#x}, v6")
    a(f"v_mul_f32 v7, {LOG2E:#x}, v7")
    a("v_exp_f32 v6, v6")
    a("v_exp_f32 v7, v7")
    a(f"ds_write_b32 v15, v8 offset:{L_M}")
    a("v_add_f32 v5, v6, v7")
    dpp("v_add_f32", "v5", "v5", "v5", "quad_perm:[1,0,3,2]")
    dpp("v_add_f32", "v5", "v5", "v5", "quad_perm:[2,3,0,1]")
    cross_rows("v_add_f32", "v5", "v9")
    a(f"ds_write_b32 v15, v5 offset:{L_L}")
    a("s_waitcnt lgkmcnt(0)")
    a("s_barrier")
    a(f"ds_read_b128 v[96:99], v14 offset:{L_M}")
    a(f"ds_read_b128 v[100:103], v14 offset:{L_L}")
    a("s_waitcnt lgkmcnt(1)")
    a("v_max3_f32 v9, v96, v97, v98")
    a("v_max_f32 v9, v9, v99")
    for i in range(4): a(f"v_sub_f32 v{96+i}, v{96+i}, v9")
    a("v_sub_f32 v8, v8, v9")
    for i in range(4): a(f"v_mul_f32 v{96+i}, {LOG2E:#x}, v{96+i}")
    a(f"v_mul_f32 v8, {LOG2E:#x}, v8")
    for i in range(4): a(f"v_exp_f32 v{96+i}, v{96+i}")
    a("v_exp_f32 v8, v8")
    a("s_waitcnt lgkmcnt(0)")
    a("v_mul_f32 v5, v96, v100")
    for i in range(1, 4): a(f"v_fmac_f32 v5, v{96+i}, v{100+i}")
    a("v_rcp_f32 v96, v5")
    a("v_log_f32 v97, v5")
    a("v_mul_f32 v8, v8, v96")
    a("v_mul_f32 v6, v6, v8")
    a("v_mul_f32 v7, v7, v8")
    a("v_cvt_pk_bf16_f32 v6, v6, v6")
    a("v_cvt_pk_bf16_f32 v7, v7, v7")
    a(f"v_fmac_f32 v97, {LOG2E:#x}, v9")
    a(f"ds_write_b32 v16, v97 offset:{L_LSE}")
    PA = lambda b, l: 32 + 2 * (4 * b + l)
    for b in range(2):
        for l in range(4):
            for q in range(2):
                dpp("v_and_b32", f"v{PA(b,l)+q}", f"v{6+b}", f"v{10+q}", f"quad_perm:[{l},{l},{l},{l}]")
    stamp(4)
    for i in range(8):
        b, l = i >> 2, i & 3
        p, r = PA(b, l), VR(b, l)
        a(f"s_waitcnt vmcnt({7-i})")
        a(f"v_mfma_f32_16x16x16_bf16 v[24:27], v[{p}:{p+1}], v[{r}:{r+1}], v[24:27]")
        a(f"v_mfma_f32_16x16x16_bf16 v[28:31], v[{p}:{p+1}], v[{r+2}:{r+3}], v[28:31]")
    stamp(5)
    a("ds_write_b128 v19, v[24:27]")
    a("ds_write_b128 v19, v[28:31] offset:1024")
    a("s_waitcnt lgkmcnt(0)")
    a("s_barrier")
    a("s_cmp_ge_u32 s3, 6")
    a("s_cbranch_scc1 L_end")
    for w in range(4):
        a(f"ds_read_b128 v[{32+4*w}:{35+4*w}], v18 offset:{w*2048}")
    a(f"ds_read_b32 v50, v17 offset:{L_LSE}")
    a("v_mov_b32 v51, s32")
    a("s_waitcnt lgkmcnt(3)")
    a("v_pk_add_f32 v[32:33], v[32:33], v[36:37]")
    a("v_pk_add_f32 v[34:35], v[34:35], v[38:39]")
    a("s_waitcnt lgkmcnt(1)")
    a("v_pk_add_f32 v[40:41], v[40:41], v[44:45]")
    a("v_pk_add_f32 v[42:43], v[42:43], v[46:47]")
    a("v_pk_add_f32 v[32:33], v[32:33], v[40:41]")
    a("v_pk_add_f32 v[34:35], v[34:35], v[42:43]")
    a("v_cvt_pk_bf16_f32 v48, v32, v33")
    a("v_cvt_pk_bf16_f32 v49, v34, v35")
    a("s_waitcnt lgkmcnt(0)")
    store2("global_store_dwordx4 v20, v[48:51], s[46:47]")
    stamp(6)
    a("s_branch L_end")

    a("L_Q1:")
    stamp(1)
    a("v_bfe_u32 v10, v1, 3, 1")
    a("v_mul_u32_u24 v10, 0x0202, v10")
    a("v_add_u32 v10, 0x0100, v10")
    a("v_lshlrev_b32 v11, 16, v10")
    a("v_or_b32 v10, 0x0c0c0000, v10")
    a("v_or_b32 v11, 0x00000c0c, v11")
    a("v_and_b32 v12, 1, v1")
    a("v_cmp_eq_u32 vcc, 1, v12")
    a("v_cndmask_b32 v10, v10, v11, vcc")
    a("v_bfe_u32 v12, v1, 1, 2")
    a("v_mov_b32 v11, 0x0c0c0c0c")
    for q in range(4):
        a(f"v_cmp_eq_u32 vcc, {q}, v12")
        a(f"v_cndmask_b32 v{16+q}, v11, v10, vcc")
    a("s_getreg_b32 s59, hwreg(HW_REG_XCC_ID)")
    a("s_waitcnt lgkmcnt(0)")
    a(f"s_add_u32 s32, s32, {TAGC:#x}")
    a("s_mov_b32 s12, s42")
    a("s_mov_b32 s13, s43")
    wsbase(46, WS_XC, [("s30", 9), ("s31", 4)])
    a("v_mov_b32 v10, s59")
    a("v_mov_b32 v11, s32")
    a("v_mov_b32 v12, 0")
    a("s_waitcnt vmcnt(16)")
    stamp(2)
    a("s_mov_b64 exec, 1")
    a("global_store_dwordx2 v12, v[10:11], s[46:47] sc1")
    a("s_mov_b64 exec, -1")
    for i in range(4):
        a(f"v_lshlrev_b32 v{24+2*i}, 16, v{4+i}")
        a(f"v_and_b32 v{25+2*i}, 0xffff0000, v{4+i}")
    a("v_pk_add_f32 v[32:33], v[24:25], v[26:27]")
    a("v_pk_add_f32 v[34:35], v[28:29], v[30:31]")
    a("v_pk_add_f32 v[32:33], v[32:33], v[34:35]")
    a("v_add_f32 v32, v32, v33")
    row_allreduce("v_add_f32", "v32")
    cross_rows("v_add_f32", "v32", "v33")
    a("v_mul_f32 v32, 0x3b000000, v32")
    for i in range(8): a(f"v_sub_f32 v{24+i}, v{24+i}, v32")
    a("v_mul_f32 v34, v24, v24")
    for i in range(1, 8): a(f"v_fmac_f32 v34, v{24+i}, v{24+i}")
    row_allreduce("v_add_f32", "v34")
    cross_rows("v_add_f32", "v34", "v33")
    a("v_mul_f32 v34, 0x3b000000, v34")
    a("v_cvt_pk_bf16_f32 v32, v32, v34")
    a("v_and_b32 v34, 0xffff0000, v32")
    a("v_lshlrev_b32 v32, 16, v32")
    a(f"v_add_f32 v34, {EPS:#x}, v34")
    rbf("v34", "v34")
    a("v_sqrt_f32 v34, v34")
    a("v_lshlrev_b32 v24, 16, v8")
    a("v_and_b32 v25, 0xffff0000, v8")
    rbf("v34", "v34")
    a("v_rcp_f32 v34, v34")
    a("v_sub_f32 v24, v24, v32")
    a("v_sub_f32 v25, v25, v32")
    a("v_cvt_pk_bf16_f32 v24, v24, v25")
    a("v_and_b32 v25, 0xffff0000, v24")
    a("v_lshlrev_b32 v24, 16, v24")
    a("v_mul_f32 v24, v24, v34")
    a("v_mul_f32 v25, v25, v34")
    a("v_cvt_pk_bf16_f32 v8, v24, v25")
    stamp(3)
    for t in range(16):
        A = 24 + 4 * (t & 1)
        a(f"v_mov_b32_dpp v9, v8 row_newbcast:{t} {DPP_ALL}")
        for q in range(4):
            a(f"v_perm_b32 v{A+q}, v9, v9, v{16+q}")
        a(f"s_waitcnt vmcnt({16-t})")
        c = "0" if t == 0 else "v[20:23]"
        a(f"v_mfma_f32_16x16x32_bf16 v[20:23], v[{A}:{A+3}], v[{64+4*t}:{67+4*t}], {c}")
    stamp(4)
    wsbase(46, WS_H1, [("s30", 13), ("s57", 11), ("s58", 8)])
    a("L_W:")
    a("s_cmp_eq_u32 s3, 0")
    a("s_cbranch_scc1 L_W0")
    a("s_getreg_b32 s59, hwreg(HW_REG_XCC_ID)")
    a("v_mov_b32 v4, 0")
    a("v_lshlrev_b32 v5, 2, v1")
    a(f"ds_write_b32 v5, v4 offset:{L_Z}")
    a("s_waitcnt lgkmcnt(0)")
    a(f"s_add_u32 s32, s32, {TAGC:#x}")
    a("L_W0:")
    a("s_lshr_b32 s33, s32, 8")
    a("s_lshr_b32 s34, s32, 16")
    a("s_lshr_b32 s35, s32, 24")
    a("v_lshrrev_b32 v4, 5, v1")
    a("v_lshlrev_b32 v5, 4, v4")
    a("v_lshrrev_b32 v12, v5, s32")
    a("v_lshrrev_b32 v13, v5, s33")
    a("v_mov_b32 v14, 0xff")
    a("v_and_b32 v5, 7, v1")
    a("v_lshlrev_b32 v15, 5, v5")
    a("v_and_b32 v5, 16, v1")
    a("v_add_u32 v15, v15, v5")
    a("v_lshl_add_u32 v15, v4, 3, v15")
    a("s_mov_b32 s44, 0x00ff00ff")
    a("s_mov_b32 s45, 0x00ff00ff")
    def half_publish(d, off_reg, base, storer):
        a(f"v_permlane32_swap_b32 v{d}, v{d+2}")
        a(f"v_permlane32_swap_b32 v{d+1}, v{d+3}")
        dpp("v_add_f32", f"v{d}", f"v{d+2}", f"v{d}", "row_ror:8")
        dpp("v_add_f32", f"v{d+1}", f"v{d+3}", f"v{d+1}", "row_ror:8")
        a(f"v_bfi_b32 v{d}, v14, v12, v{d}")
        a(f"v_bfi_b32 v{d+1}, v14, v13, v{d+1}")
        a("s_mov_b64 exec, s[44:45]")
        storer(f"global_store_dwordx2 {off_reg}, v[{d}:{d+1}], {base}")
        a("s_mov_b64 exec, -1")
    a("s_cmp_lg_u32 s3, 0")
    a("s_cbranch_scc1 L_W1")
    half_publish(20, "v15", "s[46:47]", lambda s: a(s + " sc1"))
    stamp(5)
    a("L_W1:")
    masks32(16)
    a("v_and_b32 v5, 31, v1")
    a("v_lshlrev_b32 v6, 4, v5")
    a("v_lshl_add_u32 v7, v4, 11, v6")
    a("v_lshlrev_b32 v8, 3, v5")
    a("v_lshl_add_u32 v8, v4, 2, v8")
    a("s_lshl_b32 s38, s3, 8")
    a("v_add_u32 v8, s38, v8")
    wsbase(46, WS_H1 + 4096, [("s30", 13), ("s3", 9)])
    wsbase(48, WS_XC, [("s30", 9)])
    a("s_barrier")
    stamp(6)
    poll_head("L_p1")
    a("global_load_dwordx4 v[32:35], v7, s[46:47] offset:-4096 sc1")
    a("global_load_dwordx4 v[36:39], v7, s[46:47] sc1")
    a("global_load_dwordx2 v[40:41], v6, s[48:49] sc1")
    a("s_waitcnt vmcnt(0)")
    tagcheck([32, 36], 42, 43)
    a("v_cmp_ne_u32 s[50:51], s32, v41")
    a("s_or_b64 vcc, vcc, s[50:51]")
    a("s_cbranch_vccnz L_p1")
    a("v_pk_add_f32 v[32:33], v[32:33], v[36:37]")
    a("v_pk_add_f32 v[34:35], v[34:35], v[38:39]")
    a("v_cmp_ne_u32 vcc, s59, v40")
    a("v_permlane32_swap_b32 v32, v34")
    a("v_permlane32_swap_b32 v33, v35")
    a("s_cmp_eq_u64 vcc, 0")
    a(f"s_cselect_b32 s37, {0 if P['force_slow'] else 1}, 0")
    a("v_pk_add_f32 v[32:33], v[32:33], v[34:35]")
    a("v_cvt_pk_bf16_f32 v32, v32, v33")
    a(f"ds_write_b32 v8, v32 offset:{L_Q}")
    a("v_mov_b32 v33, s37")
    a(f"v_mov_b32 v34, {L_MODE}")
    a("ds_write_b32 v34, v33")
    a("s_waitcnt lgkmcnt(0)")
    a("s_barrier")
    stamp(7)
    a("v_lshrrev_b32 v4, 4, v1")
    a("v_and_b32 v5, 15, v1")
    a("s_cmp_ge_u32 s31, 16")
    a("s_cbranch_scc1 L_F")
    a("s_and_b32 s40, s31, 3")
    a("s_lshr_b32 s41, s31, 2")
    a("s_lshl_b32 s38, s30, 2")
    a("s_add_u32 s42, s38, s40")
    a("s_lshl_b32 s38, s42, 17")
    a("s_lshl_b32 s39, s3, 15")
    a("s_add_u32 s38, s38, s39")
    a("s_lshl_b32 s39, s41, 8")
    a("s_add_u32 s38, s38, s39")
    a("s_add_u32 s38, s38, 4096")
    a("s_add_u32 s12, s12, s38")
    a("s_addc_u32 s13, s13, 0")
    a("v_lshlrev_b32 v6, 13, v4")
    a("v_lshl_add_u32 v6, v5, 4, v6")
    for i in range(8):
        a(f"global_load_dwordx4 v[{64+4*i}:{67+4*i}], v6, s[12:13] offset:{i*1024-4096} {ldf}")
    wsbase(46, WS_H2, [("s30", 16), ("s40", 14), ("s3", 12)])
    a("v_lshlrev_b32 v7, 6, v5")
    a("v_lshl_add_u32 v7, v4, 4, v7")
    a("v_lshlrev_b32 v8, 5, v5")
    a("v_lshl_add_u32 v8, v4, 4, v8")
    a("s_lshl_b32 s38, s3, 9")
    a("v_add_u32 v8, s38, v8")
    a("v_lshlrev_b32 v9, 4, v1")
    a("v_lshrrev_b32 v10, 3, v1")
    a("v_lshlrev_b32 v10, 12, v10")
    a("v_and_b32 v11, 7, v1")
    a("v_lshl_add_u32 v10, v11, 4, v10")
    wsbase(48, WS_H3, [("s41", 14), ("s42", 7)])
    a("s_barrier")
    a("s_barrier")
    stamp(8)
    G = lambda t, e: 32 + 4 * (2 * t + e)
    poll_head("L_p2")
    for t in range(2):
        for e in range(2):
            r = G(t, e)
            a(f"global_load_dwordx4 v[{r}:{r+3}], v7, s[46:47] offset:{e*2048+t*1024} sc1")
    a("s_waitcnt vmcnt(0)")
    a("v_bitop3_b32 v48, v35, v39, s32 bitop3:0x7e")
    a("v_bitop3_b32 v49, v43, v47, s32 bitop3:0x7e")
    a("v_or_b32 v48, v48, v49")
    a("v_cmp_ne_u32 vcc, 0, v48")
    a("s_cbranch_vccnz L_p2")
    stamp(9)
    a("v_max_f32 v48, v34, v42")
    row_allreduce("v_max_f32", "v48")
    a("v_sub_f32 v50, v34, v48")
    a("v_sub_f32 v52, v42, v48")
    a("v_exp_f32 v50, v50")
    a("v_exp_f32 v52, v52")
    def unpack(t, e):
        r, o = G(t, e), 96 + 8 * t + 4 * e
        a(f"v_lshlrev_b32 v{o}, 16, v{r}")
        a(f"v_and_b32 v{o+1}, 0xffff0000, v{r}")
        a(f"v_lshlrev_b32 v{o+2}, 16, v{r+1}")
        a(f"v_and_b32 v{o+3}, 0xffff0000, v{r+1}")
    a("v_add_f32 v48, v50, v52")
    ctls = ("quad_perm:[1,0,3,2]", "quad_perm:[2,3,0,1]", "row_half_mirror", "row_mirror")
    for k, (t, e) in enumerate([(0, 0), (0, 1), (1, 0), (1, 1)]):
        unpack(t, e)
        dpp("v_add_f32", "v48", "v48", "v48", ctls[k])
    for i in range(0, 8, 2):
        a(f"v_pk_mul_f32 v[{96+i}:{97+i}], v[{96+i}:{97+i}], v[50:51] op_sel_hi:[1,0]")
    a("v_rcp_f32 v48, v48")
    for i in range(0, 8, 2):
        a(f"v_pk_fma_f32 v[{96+i}:{97+i}], v[{104+i}:{105+i}], v[52:53], v[{96+i}:{97+i}] op_sel_hi:[1,0,1]")
    for i in range(4):
        dpp("v_add_f32", f"v{104+i}", f"v{96+i}", f"v{96+i}", "row_mirror", 0x3)
    for i in range(4):
        dpp("v_add_f32", f"v{104+i}", f"v{100+i}", f"v{100+i}", "row_mirror", 0xc)
    for i in range(2):
        dpp("v_add_f32", f"v{96+i}", f"v{104+i}", f"v{104+i}", "row_half_mirror", 0x5)
    for i in range(2):
        dpp("v_add_f32", f"v{96+i}", f"v{106+i}", f"v{106+i}", "row_half_mirror", 0xa)
    for ctl in ctls[:2]:
        for i in range(2):
            dpp("v_add_f32", f"v{96+i}", f"v{96+i}", f"v{96+i}", ctl)
    for i in range(2): a(f"v_mul_f32 v{96+i}, v{96+i}, v48")
    for i in range(2): a(f"v_cvt_pk_bf16_f32 v{96+i}, v{96+i}, v{96+i}")
    def abuild(i):
        A = 24 + 4 * (i & 1)
        for q in range(4):
            dpp("v_and_b32", f"v{A+q}", f"v{96+(i&1)}", f"v{16+q}", f"row_newbcast:{4*(i>>1)}")
    abuild(0)
    for i in range(8):
        if i < 7: abuild(i + 1)
        A = 24 + 4 * (i & 1)
        c = "0" if i == 0 else "v[20:23]"
        a(f"v_mfma_f32_16x16x32_bf16 v[20:23], v[{A}:{A+3}], v[{64+4*i}:{67+4*i}], {c}")
    a("s_mov_b32 exec_hi, 0")
    a(f"ds_write_b128 v8, v[20:23] offset:{L_WO}")
    a("s_waitcnt lgkmcnt(0)")
    a("s_barrier")
    stamp(10)
    a("s_cmp_eq_u32 s3, 1")
    a("s_cbranch_scc1 L_fin")
    a("s_cmp_lg_u32 s3, 0")
    a("s_cbranch_scc1 L_end")
    for w in range(4):
        a(f"ds_read_b128 v[{32+4*w}:{35+4*w}], v9 offset:{L_WO + w*512}")
    a("s_waitcnt lgkmcnt(2)")
    a("v_pk_add_f32 v[32:33], v[32:33], v[36:37]")
    a("v_pk_add_f32 v[34:35], v[34:35], v[38:39]")
    a("s_waitcnt lgkmcnt(0)")
    a("v_pk_add_f32 v[40:41], v[40:41], v[44:45]")
    a("v_pk_add_f32 v[42:43], v[42:43], v[46:47]")
    a("v_pk_add_f32 v[32:33], v[32:33], v[40:41]")
    a("v_pk_add_f32 v[34:35], v[34:35], v[42:43]")
    for i in range(4): a(f"v_bfi_b32 v{32+i}, v14, s{32+i}, v{32+i}")
    a("global_store_dwordx4 v10, v[32:35], s[48:49] sc1")
    stamp(11)
    a("s_branch L_end")
    a("L_fin:")
    a("s_mov_b64 exec, -1")
    a("s_lshr_b32 s40, s31, 3")
    a("s_lshl_b32 s40, s40, 3")
    a("s_add_u32 s40, s40, s30")
    a("s_and_b32 s41, s31, 7")
    wsbase(46, WS_H3, [("s40", 12), ("s41", 4)])
    wsbase(48, WS_H4, [("s40", 14), ("s41", 4)])
    a("s_lshl_b32 s38, s40, 6")
    a("s_lshl_b32 s39, s41, 3")
    a("s_add_u32 s38, s38, s39")
    a("v_bfe_u32 v6, v1, 2, 2")
    a("v_lshl_add_u32 v6, v6, 1, s38")
    a("global_load_ushort v24, v6, s[4:5]")
    a("global_load_ushort v25, v6, s[22:23]")
    a("v_and_b32 v7, 31, v1")
    a("v_lshlrev_b32 v7, 7, v7")
    a("v_lshlrev_b32 v8, 7, v1")
    a("v_min_u32 v9, 47, v1")
    a("v_lshlrev_b32 v9, 7, v9")
    a("v_add_u32 v9, 0x2000, v9")
    a("v_cmp_gt_u32 vcc, 48, v1")
    a("v_cndmask_b32 v26, 0, 1.0, vcc")
    def scatter4(g, o):
        dpp("v_add_f32", f"v{o+1}", f"v{g}", f"v{g}", "row_mirror", 0x3)
        dpp("v_add_f32", f"v{o+2}", f"v{g+1}", f"v{g+1}", "row_mirror", 0x3)
        dpp("v_add_f32", f"v{o+1}", f"v{g+2}", f"v{g+2}", "row_mirror", 0xc)
        dpp("v_add_f32", f"v{o+2}", f"v{g+3}", f"v{g+3}", "row_mirror", 0xc)
        dpp("v_add_f32", f"v{o}", f"v{o+1}", f"v{o+1}", "row_half_mirror", 0x5)
        dpp("v_add_f32", f"v{o}", f"v{o+2}", f"v{o+2}", "row_half_mirror", 0xa)
        dpp("v_add_f32", f"v{o}", f"v{o}", f"v{o}", ctls[0])
        dpp("v_add_f32", f"v{o}", f"v{o}", f"v{o}", ctls[1])
    poll_head("L_p3f")
    a("global_load_dwordx4 v[32:35], v7, s[46:47] sc1")
    a("s_waitcnt vmcnt(0)")
    tagcheck([32], 42, 43)
    a("s_cbranch_vccnz L_p3f")
    scatter4(32, 40)
    a("v_mov_b32 v41, v40")
    a("v_permlane16_swap_b32 v41, v40")
    a("v_add_f32 v40, v40, v41")
    rbf("v40", "v40")
    a("v_lshlrev_b32 v24, 16, v24")
    a("v_lshlrev_b32 v25, 16, v25")
    a("v_add_f32 v40, v40, v24")
    rbf("v24", "v40")
    stamp(11)
    poll_head("L_p4")
    a("global_load_dwordx4 v[32:35], v8, s[48:49] sc1")
    a("global_load_dwordx4 v[36:39], v9, s[48:49] sc1")
    a("s_waitcnt vmcnt(0)")
    tagcheck([32, 36], 42, 43)
    a("s_cbranch_vccnz L_p4")
    stamp(12)
    a("v_pk_fma_f32 v[32:33], v[36:37], v[26:27], v[32:33] op_sel_hi:[1,0,1]")
    a("v_pk_fma_f32 v[34:35], v[38:39], v[26:27], v[34:35] op_sel_hi:[1,0,1]")
    scatter4(32, 40)
    cross_rows("v_add_f32", "v40", "v41")
    rbf("v40", "v40")
    a("v_add_f32 v40, v40, v25")
    rbf("v40", "v40")
    a("v_add_f32 v40, v40, v24")
    a("v_cvt_pk_bf16_f32 v40, v40, v40")
    a("s_mov_b64 exec, 0x1111")
    a("global_store_short v6, v40, s[24:25]")
    a("s_cmp_lg_u32 s2, 0")
    a("s_cbranch_scc1 L_fin_done")
    a("s_mov_b64 exec, 1")
    a("v_mov_b32 v41, 0")
    a("v_mov_b32 v42, s32")
    a("global_store_dword v41, v42, s[28:29] sc1")
    a("L_fin_done:")
    stamp(13)
    a("s_branch L_end")
    a("L_F:")
    a("s_sub_u32 s40, s31, 16")
    a(f"s_mul_i32 s38, s40, {32*3584}")
    a("s_lshl_b32 s39, s30, 9")
    a("s_add_u32 s38, s38, s39")
    a("s_lshl_b32 s39, s3, 7")
    a("s_add_u32 s38, s38, s39")
    a("s_add_u32 s16, s16, s38")
    a("s_addc_u32 s17, s17, 0")
    a("v_lshrrev_b32 v6, 3, v1")
    a("v_and_b32 v7, 7, v1")
    a(f"v_mul_u32_u24 v8, {4*3584}, v6")
    a("v_lshl_add_u32 v8, v7, 4, v8")
    a(f"v_add_u32 v9, {2*3584}, v8")
    a("s_lshl_b32 s38, s30, 4")
    a("s_add_u32 s41, s38, s40")
    a("s_lshl_b32 s38, s41, 14")
    a("s_lshl_b32 s39, s3, 8")
    a("s_add_u32 s38, s38, s39")
    a("s_add_u32 s20, s20, s38")
    a("s_addc_u32 s21, s21, 0")
    a("v_lshlrev_b32 v10, 12, v4")
    a("v_lshl_add_u32 v10, v5, 4, v10")
    a("v_bfe_u32 v11, v1, 2, 1")
    a("v_lshl_add_u32 v11, v6, 2, v11")
    a("s_lshl_b32 s38, s40, 6")
    a("v_lshl_add_u32 v11, v11, 1, s38")
    a("v_lshrrev_b32 v2, 2, v1")
    a("s_lshl_b32 s38, s41, 5")
    a("v_lshl_add_u32 v2, v2, 1, s38")
    a("v_lshlrev_b32 v3, 7, v7")
    a("v_lshl_add_u32 v3, v6, 4, v3")
    wsbase(46, WS_H3, [("s40", 12)])
    a("v_lshrrev_b32 v6, 1, v7")
    a("v_lshlrev_b32 v6, 12, v6")
    a("v_and_b32 v15, 63, v15")
    a("v_add_u32 v15, v15, v6")
    wsbase(48, WS_H3B, [("s30", 16), ("s3", 14), ("s40", 6)])
    wsbase(50, WS_ST, [("s30", 8)])
    wsbase(52, WS_H3B, [("s30", 16), ("s40", 12)])
    wsbase(54, WS_H4, [("s3", 16), ("s41", 7)])
    a("v_lshlrev_b32 v6, 6, v5")
    a("v_lshl_add_u32 v6, v4, 4, v6")
    a("v_lshlrev_b32 v7, 4, v5")
    a("v_lshrrev_b32 v56, 2, v5")
    a("v_lshlrev_b32 v56, 14, v56")
    a("v_and_b32 v57, 3, v5")
    a("v_lshl_add_u32 v56, v57, 5, v56")
    a("v_lshl_add_u32 v56, v4, 4, v56")
    a("s_lshl_b32 s38, s40, 4")
    a("v_mov_b32 v57, s38")
    for q in range(4): a(f"v_and_b32 v{24+q}, 0x3f803f80, v{16+q}")
    a("s_barrier")
    a("s_barrier")
    a("s_cmp_eq_u32 s30, 7")
    a("s_cbranch_scc1 L_end")
    stamp(8)
    for t in range(4):
        a(f"global_load_dwordx4 v[{64+4*t}:{67+4*t}], v{8+(t>>1)}, s[16:17] offset:{(t&1)*3584} {ldf}")
    a("global_load_ushort v58, v11, s[4:5]")
    a("global_load_ushort v59, v11, s[4:5] offset:4")
    a("global_load_ushort v60, v2, s[18:19]")
    for t in range(4):
        a(f"global_load_dwordx4 v[{80+4*t}:{83+4*t}], v10, s[20:21] offset:{t*1024} {ldf}")
    a("s_waitcnt vmcnt(4)")
    for t in range(4):
        c = "0" if t == 0 else "v[20:23]"
        a(f"v_mfma_f32_16x16x32_bf16 v[20:23], v[24:27], v[{64+4*t}:{67+4*t}], {c}")
    a("v_lshlrev_b32 v58, 16, v58")
    a("v_lshlrev_b32 v59, 16, v59")
    a("v_lshlrev_b32 v60, 16, v60")
    half_publish(20, "v15", "s[48:49] offset:2048", store2)
    stamp(9)
    poll_head("L_p3")
    for t in range(4):
        a(f"global_load_dwordx4 v[{32+4*t}:{35+4*t}], v3, s[46:47] offset:{t*1024} sc1")
    a("s_waitcnt vmcnt(0)")
    tagcheck([32, 36, 40, 44], 48, 49)
    a("s_cbranch_vccnz L_p3")
    stamp(10)
    a("v_pk_add_f32 v[32:33], v[32:33], v[36:37]")
    a("v_pk_add_f32 v[34:35], v[34:35], v[38:39]")
    a("v_pk_add_f32 v[40:41], v[40:41], v[44:45]")
    a("v_pk_add_f32 v[42:43], v[42:43], v[46:47]")
    a("v_pk_add_f32 v[32:33], v[32:33], v[40:41]")
    a("v_pk_add_f32 v[34:35], v[34:35], v[42:43]")
    dpp("v_add_f32", "v36", "v32", "v32", "row_half_mirror", 0x5)
    dpp("v_add_f32", "v37", "v34", "v34", "row_half_mirror", 0x5)
    dpp("v_add_f32", "v36", "v33", "v33", "row_half_mirror", 0xa)
    dpp("v_add_f32", "v37", "v35", "v35", "row_half_mirror", 0xa)
    for ctl in ctls[:2]:
        for i in range(2):
            dpp("v_add_f32", f"v{36+i}", f"v{36+i}", f"v{36+i}", ctl)
    a("v_cvt_pk_bf16_f32 v36, v36, v37")
    a("v_and_b32 v37, 0xffff0000, v36")
    a("v_lshlrev_b32 v36, 16, v36")
    a("v_pk_add_f32 v[36:37], v[36:37], v[58:59]")
    a("v_cvt_pk_bf16_f32 v36, v36, v36")
    a("v_cvt_pk_bf16_f32 v37, v37, v37")
    def abuild1(t):
        A = 24 + 4 * (t & 1)
        for q in range(4):
            ctl = "quad_perm:[0,1,2,3]" if (q >> 1) == (t & 1) else "row_half_mirror"
            dpp("v_and_b32", f"v{A+q}", f"v{36+(t>>1)}", f"v{16+q}", ctl)
    abuild1(0)
    for t in range(4):
        if t < 3: abuild1(t + 1)
        A = 24 + 4 * (t & 1)
        c = "0" if t == 0 else "v[20:23]"
        a(f"v_mfma_f32_16x16x32_bf16 v[20:23], v[{A}:{A+3}], v[{64+4*t}:{67+4*t}], {c}")
    half_publish(20, "v15", "s[48:49]", store2)
    a("s_cmp_lg_u32 s3, 3")
    a("s_cbranch_scc1 L_F1")
    a("v_lshlrev_b32 v36, 16, v36")
    a("v_lshlrev_b32 v37, 16, v37")
    a("v_add_f32 v40, v36, v37")
    dpp("v_add_f32", "v40", "v40", "v40", "row_half_mirror")
    dpp("v_add_f32", "v40", "v40", "v40", "row_mirror")
    cross_rows("v_add_f32", "v40", "v41")
    a("v_mul_f32 v40, 0x3d000000, v40")
    a("v_sub_f32 v36, v36, v40")
    a("v_sub_f32 v37, v37, v40")
    a("v_mul_f32 v41, v36, v36")
    a("v_fmac_f32 v41, v37, v37")
    dpp("v_add_f32", "v41", "v41", "v41", "row_half_mirror")
    dpp("v_add_f32", "v41", "v41", "v41", "row_mirror")
    cross_rows("v_add_f32", "v41", "v42")
    a("v_mov_b32 v42, s32")
    a("v_mov_b32 v43, s32")
    a("s_mov_b64 exec, 1")
    store2("global_store_dwordx4 v57, v[40:43], s[50:51]")
    a("s_mov_b64 exec, -1")
    a("L_F1:")
    stamp(11)
    poll_head("L_p3b")
    a("global_load_dwordx4 v[32:35], v6, s[52:53] sc1")
    a("global_load_dwordx4 v[36:39], v6, s[52:53] offset:2048 sc1")
    a("global_load_dwordx4 v[40:43], v7, s[50:51] sc1")
    a("s_waitcnt vmcnt(0)")
    tagcheck([32, 36], 44, 45)
    a("v_cmp_ne_u32 s[56:57], s32, v43")
    a("s_or_b64 vcc, vcc, s[56:57]")
    a("s_cbranch_vccnz L_p3b")
    stamp(12)
    a("v_mov_b32 v44, v40")
    row_allreduce("v_add_f32", "v44")
    a("v_mul_f32 v44, 0x3d800000, v44")
    a("v_sub_f32 v40, v40, v44")
    rbf("v44", "v44")
    a("v_mul_f32 v40, v40, v40")
    a("v_fmac_f32 v41, 0x42000000, v40")
    a("v_pk_fma_f32 v[32:33], v[36:37], v[44:45], v[32:33] op_sel_hi:[1,0,1] neg_lo:[0,1,0] neg_hi:[0,1,0]")
    a("v_pk_fma_f32 v[34:35], v[38:39], v[44:45], v[34:35] op_sel_hi:[1,0,1] neg_lo:[0,1,0] neg_hi:[0,1,0]")
    row_allreduce("v_add_f32", "v41")
    a("v_mul_f32 v41, 0x3b000000, v41")
    rbf("v41", "v41")
    a(f"v_add_f32 v41, {EPS:#x}, v41")
    rbf("v41", "v41")
    a("v_sqrt_f32 v41, v41")
    scatter4(32, 36)
    rbf("v41", "v41")
    a("v_rcp_f32 v41, v41")
    a("v_mul_f32 v36, v36, v41")
    rbf("v36", "v36")
    a("v_add_f32 v36, v36, v60")
    rbf("v36", "v36")
    a("v_max_f32 v36, 0, v36")
    a("v_mul_f32 v36, v36, v36")
    a("v_cvt_pk_bf16_f32 v36, v36, v36")
    def abuild2(t):
        A = 24 + 4 * (t & 1)
        for q in range(4):
            dpp("v_and_b32", f"v{A+q}", "v36", f"v{16+q}", f"row_newbcast:{4*t}")
    abuild2(0)
    for t in range(4):
        if t < 3: abuild2(t + 1)
        A = 24 + 4 * (t & 1)
        c = "0" if t == 0 else "v[20:23]"
        a(f"v_mfma_f32_16x16x32_bf16 v[20:23], v[{A}:{A+3}], v[{80+4*t}:{83+4*t}], {c}")
    a("s_mov_b32 exec_hi, 0")
    for i in range(4): a(f"v_bfi_b32 v{20+i}, v14, s{32+i}, v{20+i}")
    a("global_store_dwordx4 v56, v[20:23], s[54:55] sc1")
    stamp(13)
    a("L_end:")
    if P["stamps"]:
        a("s_mov_b64 exec, -1")
        a("s_memrealtime s[88:89]")
        a("s_getreg_b32 s90, hwreg(HW_REG_XCC_ID)")
        a("s_waitcnt lgkmcnt(0)")
        a("v_mov_b32 v2, 0")
        for i in range(16): a(f"v_writelane_b32 v2, s{60+2*i}, {i}")
        a("v_writelane_b32 v2, s36, 16")
        a("v_writelane_b32 v2, s37, 17")
        wsbase(46, WS_DBG, [("s2", 10), ("s3", 7)])
        a("v_lshlrev_b32 v3, 2, v1")
        a("s_mov_b32 exec_hi, 0")
        a("global_store_dword v3, v2, s[46:47]")
    a("L_exit:")
    a("s_endpgm")
    body = a.text()
    if P["stamps"]:
        body = "".join(f"    s_mov_b32 s{60+i}, 0\n" for i in range(2, 32, 2)) + "    s_mov_b32 s37, 0\n" + body
    head = open("cdna_kernels/" + NAME + ".s.ref").read().split("; Override launch")[0]
    out = head
    out += f"; @launch grid=(256,1,1) block=(512,1,1) lds={LDS_BYTES}\n"
    out += '.amdgcn_target "amdgcn-amd-amdhsa--gfx950"\n.text\n'
    out += f".globl {NAME}_kernel\n.p2align 8\n.type {NAME}_kernel,@function\n{NAME}_kernel:\n"
    out += body
    out += ".fill 1280, 4, 0xbf800000\n"
    out += f""".section .rodata,"a"
.p2align 6
.amdhsa_kernel {NAME}_kernel
  .amdhsa_next_free_vgpr 128
  .amdhsa_next_free_sgpr 96
  .amdhsa_accum_offset 128
  .amdhsa_group_segment_fixed_size 0
  .amdhsa_kernarg_size 104
  .amdhsa_user_sgpr_count 2
  .amdhsa_user_sgpr_kernarg_segment_ptr 1
  .amdhsa_system_sgpr_workgroup_id_x 1
  .amdhsa_float_denorm_mode_32 3
.end_amdhsa_kernel
"""
    return out, a.nops

if __name__ == "__main__":
    kw = {}
    out = "cdna_kernels/" + NAME + ".s"
    for arg in sys.argv[1:]:
        k, v = arg.split("=", 1)
        if k == "out": out = v
        else: kw[k] = int(v) if v.lstrip("-").isdigit() else v
    txt, nops = gen(**kw)
    open(out, "w").write(txt)
    print("wrote", out, "auto nop states:", nops)
```

```python
import sys
from asmlib import Asm

NAME = "sequential_preLN__sliding_block_cached__dense_activation_squared_relu__decode"

DEF = dict(amp=-1, ampwg=0, stamps=0, nv1=4, b0wait=4, ldf="nt", force_slow=0, pad=0)

WS_H1, WS_XC, WS_H2, WS_H3, WS_H3B, WS_ST, WS_H4, WS_DBG = 0x1000, 0x11000, 0x20000, 0xA0000, 0xB0000, 0x130000, 0x140000, 0x200000
L_Q, L_Z, L_M, L_L, L_LSE, L_MODE, L_PV, L_WO = 0, 1024, 1280, 1344, 1408, 1424, 2048, 10240
LDS_BYTES = 12288
TAGC = 0x6D2B79F5
LOG2E = 0x3FB8AA3B
SCALE = 0x3DB504F3
EPS = 0x3727C5AC

DPP_ALL = "row_mask:0xf bank_mask:0xf"

def gen(**kw):
    P = dict(DEF); P.update(kw)
    ldf = P["ldf"]
    a = Asm()
    nst = [0]
    def stamp(i):
        if P["stamps"] or (P["amp"] >= 0 and i in (0, P["amp"])):
            a(f"s_memrealtime s[{60+2*i}:{61+2*i}]")
    def rbf(dst, src):
        a(f"v_cvt_pk_bf16_f32 {dst}, {src}, {src}")
        a(f"v_lshlrev_b32 {dst}, 16, {dst}")
    def dpp(op, d, s0, s1, ctl, bank=0xf):
        a(f"{op}_dpp {d}, {s0}, {s1} {ctl} row_mask:0xf bank_mask:{bank:#x}")
    def row_allreduce(op, r):
        for ctl in ("quad_perm:[1,0,3,2]", "quad_perm:[2,3,0,1]", "row_half_mirror", "row_mirror"):
            dpp(op, r, r, r, ctl)
    def cross_rows(op, r, t):
        for sw in ("v_permlane16_swap_b32", "v_permlane32_swap_b32"):
            a(f"v_mov_b32 {t}, {r}")
            a(f"{sw} {t}, {r}")
            a(f"{op} {r}, {r}, {t}")
    def tagcheck(groups, t0, t1):
        first = True
        if len(groups) == 1:
            g = groups[0]
            a(f"v_xor_b32 v{t0}, s32, v{g}")
            for i in range(1, 4):
                a(f"v_bitop3_b32 v{t0}, v{g+i}, s{32+i}, v{t0} bitop3:0xbe")
        else:
            for k in range(0, len(groups), 2):
                g0, g1 = groups[k], groups[k + 1]
                for i in range(0, 4, 2):
                    if first:
                        a(f"v_bitop3_b32 v{t0}, v{g0+i}, v{g1+i}, s{32+i} bitop3:0x7e")
                        a(f"v_bitop3_b32 v{t1}, v{g0+i+1}, v{g1+i+1}, s{33+i} bitop3:0x7e")
                        a(f"v_or_b32 v{t0}, v{t0}, v{t1}")
                        first = False
                    else:
                        a(f"v_bitop3_b32 v{t1}, v{g0+i}, v{g1+i}, s{32+i} bitop3:0x7e")
                        a(f"v_bitop3_b32 v{t1+1}, v{g0+i+1}, v{g1+i+1}, s{33+i} bitop3:0x7e")
                        a(f"v_or3_b32 v{t0}, v{t0}, v{t1}, v{t1+1}")
        a(f"v_and_b32 v{t0}, 0xff, v{t0}")
        a(f"v_cmp_ne_u32 vcc, 0, v{t0}")
    def poll_head(lbl):
        a(f"{lbl}:")
        a("s_sub_u32 s36, s36, 1")
        a("s_cbranch_scc1 L_end")
    def store2(instr):
        n = nst[0]; nst[0] += 1
        a("s_cmp_eq_u32 s37, 0")
        a(f"s_cbranch_scc1 L_st{n}_slow")
        a(instr)
        a(f"s_branch L_st{n}_done")
        a(f"L_st{n}_slow:")
        a(instr + " sc1")
        a(f"L_st{n}_done:")
    def wsbase(dst, const, terms):
        a(f"s_mov_b32 s38, {const:#x}")
        for reg, sh in terms:
            a(f"s_lshl_b32 s39, {reg}, {sh}")
            a("s_add_u32 s38, s38, s39")
        a(f"s_add_u32 s{dst}, s28, s38")
        a(f"s_addc_u32 s{dst+1}, s29, 0")
    def masks32(m):
        a("v_and_b32 v2, 1, v1")
        a("v_lshlrev_b32 v2, 4, v2")
        a("v_mov_b32 v3, 0xffff")
        a("v_lshlrev_b32 v2, v2, v3")
        a("v_bfe_u32 v3, v1, 1, 2")
        for q in range(4):
            a(f"v_cmp_eq_u32 vcc, {q}, v3")
            a(f"v_cndmask_b32 v{m+q}, 0, v2, vcc")

    stamp(0)
    a("s_load_dwordx16 s[4:19], s[0:1], 0")
    a("s_load_dwordx8 s[20:27], s[0:1], 64")
    a("s_load_dwordx2 s[28:29], s[0:1], 96")
    a("s_cmp_ge_u32 s2, 256")
    a("s_cbranch_scc1 L_exit")
    a("v_lshrrev_b32 v2, 6, v0")
    a("v_and_b32 v1, 63, v0")
    a("v_readfirstlane_b32 s3, v2")
    a("s_and_b32 s30, s2, 7")
    a("s_lshr_b32 s31, s2, 3")
    a("s_mov_b32 s36, 0x20000")
    a("s_cmp_ge_u32 s3, 4")
    a("s_cbranch_scc1 L_A")
    a("s_cmp_eq_u32 s3, 0")
    a("s_cbranch_scc1 L_Q")
    a("s_getpc_b64 s[40:41]")
    a("s_and_b32 s40, s40, 0xffffff00")
    a("s_lshl_b32 s38, s31, 7")
    a("s_lshl_b32 s39, s3, 12")
    a("s_add_u32 s38, s38, s39")
    a("v_mov_b32 v2, s38")
    a("global_load_dword v127, v2, s[40:41] offset:-4096")
    a("s_waitcnt lgkmcnt(0)")
    a("s_load_dword s32, s[28:29], 0")
    a("s_barrier")
    a("s_branch L_W")
    a("L_Q:")
    a("s_movk_i32 s56, 0x4000")
    a("s_mov_b32 s40, 0")
    for t in range(1, 16):
        a(f"s_add_u32 s{40+t}, s{39+t}, s56")
    a("v_lshrrev_b32 v2, 4, v1")
    a("v_lshlrev_b32 v2, 18, v2")
    a("v_bfe_u32 v3, v1, 3, 1")
    a("v_lshl_add_u32 v2, v3, 13, v2")
    a("v_and_b32 v3, 7, v1")
    a("v_lshl_add_u32 v2, v3, 4, v2")
    a("s_lshr_b32 s57, s31, 3")
    a("s_and_b32 s58, s31, 7")
    a("s_lshl_b32 s38, s57, 20")
    a("s_lshl_b32 s39, s30, 10")
    a("s_add_u32 s38, s38, s39")
    a("s_lshl_b32 s39, s58, 7")
    a("s_add_u32 s38, s38, s39")
    a("s_lshl_b32 s39, s57, 8")
    a("v_lshlrev_b32 v3, 4, v1")
    a("v_lshl_add_u32 v9, v1, 2, s39")
    a("s_waitcnt lgkmcnt(0)")
    a("s_add_u32 s12, s10, s38")
    a("s_addc_u32 s13, s11, 0")
    a(f"s_mov_b32 s14, {127*8192+128}")
    a("s_mov_b32 s15, 0x20000")
    a("global_load_dwordx4 v[4:7], v3, s[4:5]")
    a("global_load_dword v8, v9, s[4:5]")
    for t in range(16):
        a(f"buffer_load_dwordx4 v[{64+4*t}:{67+4*t}], v2, s[12:15], s{40+t} offen {ldf}")
    a("s_load_dword s32, s[28:29], 0")
    a("s_load_dwordx2 s[42:43], s[0:1], 32")
    a("s_barrier")
    a("s_branch L_Q1")
    a("L_A:")
    a("v_and_b32 v2, 1, v1")
    a("v_lshlrev_b32 v2, 4, v2")
    a("v_bfe_u32 v3, v1, 1, 3")
    a("v_lshl_add_u32 v2, v3, 8, v2")
    a("v_lshrrev_b32 v4, 4, v1")
    a("v_lshl_add_u32 v2, v4, 5, v2")
    a("v_and_b32 v3, 15, v1")
    a("v_lshlrev_b32 v3, 4, v3")
    a("v_lshl_add_u32 v3, v4, 9, v3")
    a("s_lshl_b32 s38, s30, 24")
    a("s_lshl_b32 s39, s3, 18")
    a("s_add_u32 s38, s38, s39")
    a("s_lshl_b32 s39, s31, 13")
    a("s_add_u32 s38, s38, s39")
    a(f"s_add_u32 s38, s38, {(15<<20) + 4096 - (4<<18)}")
    a("s_waitcnt lgkmcnt(0)")
    a("s_load_dword s32, s[28:29], 0")
    a("s_add_u32 s6, s6, s38")
    a("s_addc_u32 s7, s7, 0")
    a("s_add_u32 s8, s8, s38")
    a("s_addc_u32 s9, s9, 0")
    a("s_barrier")
    KR = lambda b, v, hf: 32 + 4 * (4 * b + 2 * v + hf)
    VR = lambda b, l: 64 + 4 * (4 * b + l)
    for b in range(2):
        for v in range(2):
            for hf in range(2):
                r = KR(b, v, hf)
                a(f"global_load_dwordx4 v[{r}:{r+3}], v2, s[6:7] offset:{(2*b+v)*2048 + hf*128 - 4096} {ldf}")
    def vload(i):
        b, l = i >> 2, i & 3
        r = VR(b, l)
        a(f"global_load_dwordx4 v[{r}:{r+3}], v3, s[8:9] offset:{b*4096 + (l>>1)*2048 + (l&1)*256 - 4096} {ldf}")
    a("s_nop 0")
    for i in range(P["nv1"]): vload(i)
    stamp(1)
    a("v_and_b32 v5, 1, v1")
    a("v_lshlrev_b32 v6, 4, v5")
    a("v_mov_b32 v7, 0xffff")
    a("v_lshlrev_b32 v6, v6, v7")
    a("v_and_b32 v7, 2, v1")
    a("v_cmp_eq_u32 vcc, 0, v7")
    a("v_cndmask_b32 v10, 0, v6, vcc")
    a("v_cndmask_b32 v11, v6, 0, vcc")
    a("v_bfe_u32 v6, v1, 2, 2")
    a("v_lshlrev_b32 v8, 8, v6")
    a("v_lshl_add_u32 v8, v4, 5, v8")
    a("v_lshl_add_u32 v8, v5, 4, v8")
    a(f"v_mov_b32 v9, {L_Z}")
    a("v_cndmask_b32 v12, v9, v8, vcc")
    a("v_cndmask_b32 v13, v8, v9, vcc")
    a("v_cmp_eq_u32 s[44:45], 1, v5")
    a("v_lshlrev_b32 v14, 4, v6")
    a("s_lshl_b32 s38, s3, 2")
    a("s_sub_u32 s38, s38, 16")
    a("v_add_u32 v15, s38, v14")
    a("v_lshlrev_b32 v16, 2, v6")
    a("v_lshlrev_b32 v17, 2, v4")
    a("v_lshlrev_b32 v18, 4, v1")
    a("s_lshl_b32 s38, s3, 11")
    a(f"s_add_u32 s38, s38, {L_PV - 4*2048}")
    a("v_add_u32 v19, s38, v18")
    a("s_lshl_b32 s38, s3, 10")
    a(f"s_add_u32 s38, s38, {L_PV - 4*1024}")
    a("v_add_u32 v18, s38, v18")
    a("v_lshlrev_b32 v20, 14, v4")
    a("v_lshl_add_u32 v20, v6, 12, v20")
    a("v_and_b32 v7, 3, v1")
    a("v_lshl_add_u32 v20, v7, 4, v20")
    for r in range(24, 32): a(f"v_mov_b32 v{r}, 0")
    a("v_mov_b32 v21, 0")
    a(f"v_mov_b32 v22, {L_MODE}")
    a("s_waitcnt lgkmcnt(0)")
    a(f"s_add_u32 s32, s32, {TAGC:#x}")
    wsbase(46, WS_H2 - 4 * 2048, [("s30", 16), ("s3", 11), ("s31", 6)])
    a(f"s_waitcnt vmcnt({P['b0wait']})")
    a("s_barrier")
    stamp(2)
    for i in range(P["nv1"], 8): vload(i)
    a("s_barrier")
    stamp(3)
    QB = lambda v, hf: 96 + 4 * (2 * v + hf)
    for v in range(2):
        for hf in range(2):
            r = QB(v, hf)
            a(f"ds_read_b128 v[{r}:{r+3}], v{12+v} offset:{hf*128}")
    a("ds_read_b32 v23, v22")
    a("s_waitcnt vmcnt(8) lgkmcnt(0)")
    for v in range(2):
        for hf in range(2):
            for b in range(2):
                k, q, d = KR(b, v, hf), QB(v, hf), 112 + 4 * b
                c = "0" if (v == 0 and hf == 0) else f"v[{d}:{d+3}]"
                a(f"v_mfma_f32_16x16x32_bf16 v[{d}:{d+3}], v[{k}:{k+3}], v[{q}:{q+3}], {c}")
    a("v_readfirstlane_b32 s37, v23")
    for b in range(2):
        d = 112 + 4 * b
        a(f"v_cndmask_b32 v{d+1}, v{d+2}, v{d+1}, s[44:45]")
        a(f"v_cndmask_b32 v{d}, v{d}, v{d+3}, s[44:45]")
    for b in range(2):
        d = 112 + 4 * b
        dpp("v_add_f32", f"v{d}", f"v{d+1}", f"v{d}", "quad_perm:[1,0,3,2]")
    a("v_cvt_pk_bf16_f32 v5, v112, v116")
    a("v_lshlrev_b32 v6, 16, v5")
    a("v_and_b32 v7, 0xffff0000, v5")
    a(f"v_mul_f32 v6, {SCALE:#x}, v6")
    a(f"v_mul_f32 v7, {SCALE:#x}, v7")
    a("v_cvt_pk_bf16_f32 v5, v6, v7")
    a("v_lshlrev_b32 v6, 16, v5")
    a("v_and_b32 v7, 0xffff0000, v5")
    a("v_max_f32 v8, v6, v7")
    dpp("v_max_f32", "v8", "v8", "v8", "quad_perm:[1,0,3,2]")
    dpp("v_max_f32", "v8", "v8", "v8", "quad_perm:[2,3,0,1]")
    cross_rows("v_max_f32", "v8", "v9")
    a("v_sub_f32 v6, v6, v8")
    a("v_sub_f32 v7, v7, v8")
    a(f"v_mul_f32 v6, {LOG2E:#x}, v6")
    a(f"v_mul_f32 v7, {LOG2E:#x}, v7")
    a("v_exp_f32 v6, v6")
    a("v_exp_f32 v7, v7")
    a(f"ds_write_b32 v15, v8 offset:{L_M}")
    a("v_add_f32 v5, v6, v7")
    dpp("v_add_f32", "v5", "v5", "v5", "quad_perm:[1,0,3,2]")
    dpp("v_add_f32", "v5", "v5", "v5", "quad_perm:[2,3,0,1]")
    cross_rows("v_add_f32", "v5", "v9")
    a(f"ds_write_b32 v15, v5 offset:{L_L}")
    a("s_waitcnt lgkmcnt(0)")
    a("s_barrier")
    a(f"ds_read_b128 v[96:99], v14 offset:{L_M}")
    a(f"ds_read_b128 v[100:103], v14 offset:{L_L}")
    a("s_waitcnt lgkmcnt(1)")
    a("v_max3_f32 v9, v96, v97, v98")
    a("v_max_f32 v9, v9, v99")
    for i in range(4): a(f"v_sub_f32 v{96+i}, v{96+i}, v9")
    a("v_sub_f32 v8, v8, v9")
    for i in range(4): a(f"v_mul_f32 v{96+i}, {LOG2E:#x}, v{96+i}")
    a(f"v_mul_f32 v8, {LOG2E:#x}, v8")
    for i in range(4): a(f"v_exp_f32 v{96+i}, v{96+i}")
    a("v_exp_f32 v8, v8")
    a("s_waitcnt lgkmcnt(0)")
    a("v_mul_f32 v5, v96, v100")
    for i in range(1, 4): a(f"v_fmac_f32 v5, v{96+i}, v{100+i}")
    a("v_rcp_f32 v96, v5")
    a("v_log_f32 v97, v5")
    a("v_mul_f32 v8, v8, v96")
    a("v_mul_f32 v6, v6, v8")
    a("v_mul_f32 v7, v7, v8")
    a("v_cvt_pk_bf16_f32 v6, v6, v6")
    a("v_cvt_pk_bf16_f32 v7, v7, v7")
    a(f"v_fmac_f32 v97, {LOG2E:#x}, v9")
    a(f"ds_write_b32 v16, v97 offset:{L_LSE}")
    PA = lambda b, l: 32 + 2 * (4 * b + l)
    for b in range(2):
        for l in range(4):
            for q in range(2):
                dpp("v_and_b32", f"v{PA(b,l)+q}", f"v{6+b}", f"v{10+q}", f"quad_perm:[{l},{l},{l},{l}]")
    stamp(4)
    for i in range(8):
        b, l = i >> 2, i & 3
        p, r = PA(b, l), VR(b, l)
        a(f"s_waitcnt vmcnt({7-i})")
        a(f"v_mfma_f32_16x16x16_bf16 v[24:27], v[{p}:{p+1}], v[{r}:{r+1}], v[24:27]")
        a(f"v_mfma_f32_16x16x16_bf16 v[28:31], v[{p}:{p+1}], v[{r+2}:{r+3}], v[28:31]")
    stamp(5)
    a("ds_write_b128 v19, v[24:27]")
    a("ds_write_b128 v19, v[28:31] offset:1024")
    a("s_waitcnt lgkmcnt(0)")
    a("s_barrier")
    a("s_cmp_ge_u32 s3, 6")
    a("s_cbranch_scc1 L_end")
    for w in range(4):
        a(f"ds_read_b128 v[{32+4*w}:{35+4*w}], v18 offset:{w*2048}")
    a(f"ds_read_b32 v50, v17 offset:{L_LSE}")
    a("v_mov_b32 v51, s32")
    a("s_waitcnt lgkmcnt(3)")
    a("v_pk_add_f32 v[32:33], v[32:33], v[36:37]")
    a("v_pk_add_f32 v[34:35], v[34:35], v[38:39]")
    a("s_waitcnt lgkmcnt(1)")
    a("v_pk_add_f32 v[40:41], v[40:41], v[44:45]")
    a("v_pk_add_f32 v[42:43], v[42:43], v[46:47]")
    a("v_pk_add_f32 v[32:33], v[32:33], v[40:41]")
    a("v_pk_add_f32 v[34:35], v[34:35], v[42:43]")
    a("v_cvt_pk_bf16_f32 v48, v32, v33")
    a("v_cvt_pk_bf16_f32 v49, v34, v35")
    a("s_waitcnt lgkmcnt(0)")
    store2("global_store_dwordx4 v20, v[48:51], s[46:47]")
    stamp(6)
    a("s_branch L_end")

    a("L_Q1:")
    stamp(1)
    a("v_bfe_u32 v10, v1, 3, 1")
    a("v_mul_u32_u24 v10, 0x0202, v10")
    a("v_add_u32 v10, 0x0100, v10")
    a("v_lshlrev_b32 v11, 16, v10")
    a("v_or_b32 v10, 0x0c0c0000, v10")
    a("v_or_b32 v11, 0x00000c0c, v11")
    a("v_and_b32 v12, 1, v1")
    a("v_cmp_eq_u32 vcc, 1, v12")
    a("v_cndmask_b32 v10, v10, v11, vcc")
    a("v_bfe_u32 v12, v1, 1, 2")
    a("v_mov_b32 v11, 0x0c0c0c0c")
    for q in range(4):
        a(f"v_cmp_eq_u32 vcc, {q}, v12")
        a(f"v_cndmask_b32 v{16+q}, v11, v10, vcc")
    a("s_getreg_b32 s59, hwreg(HW_REG_XCC_ID)")
    a("s_waitcnt lgkmcnt(0)")
    a(f"s_add_u32 s32, s32, {TAGC:#x}")
    a("s_mov_b32 s12, s42")
    a("s_mov_b32 s13, s43")
    wsbase(46, WS_XC, [("s30", 9), ("s31", 4)])
    a("v_mov_b32 v10, s59")
    a("v_mov_b32 v11, s32")
    a("v_mov_b32 v12, 0")
    a("s_waitcnt vmcnt(16)")
    stamp(2)
    a("s_mov_b64 exec, 1")
    a("global_store_dwordx2 v12, v[10:11], s[46:47] sc1")
    a("s_mov_b64 exec, -1")
    for i in range(4):
        a(f"v_lshlrev_b32 v{24+2*i}, 16, v{4+i}")
        a(f"v_and_b32 v{25+2*i}, 0xffff0000, v{4+i}")
    a("v_pk_add_f32 v[32:33], v[24:25], v[26:27]")
    a("v_pk_add_f32 v[34:35], v[28:29], v[30:31]")
    a("v_pk_add_f32 v[32:33], v[32:33], v[34:35]")
    a("v_add_f32 v32, v32, v33")
    row_allreduce("v_add_f32", "v32")
    cross_rows("v_add_f32", "v32", "v33")
    a("v_mul_f32 v32, 0x3b000000, v32")
    for i in range(8): a(f"v_sub_f32 v{24+i}, v{24+i}, v32")
    a("v_mul_f32 v34, v24, v24")
    for i in range(1, 8): a(f"v_fmac_f32 v34, v{24+i}, v{24+i}")
    row_allreduce("v_add_f32", "v34")
    cross_rows("v_add_f32", "v34", "v33")
    a("v_mul_f32 v34, 0x3b000000, v34")
    a("v_cvt_pk_bf16_f32 v32, v32, v34")
    a("v_and_b32 v34, 0xffff0000, v32")
    a("v_lshlrev_b32 v32, 16, v32")
    a(f"v_add_f32 v34, {EPS:#x}, v34")
    rbf("v34", "v34")
    a("v_sqrt_f32 v34, v34")
    a("v_lshlrev_b32 v24, 16, v8")
    a("v_and_b32 v25, 0xffff0000, v8")
    rbf("v34", "v34")
    a("v_rcp_f32 v34, v34")
    a("v_sub_f32 v24, v24, v32")
    a("v_sub_f32 v25, v25, v32")
    a("v_cvt_pk_bf16_f32 v24, v24, v25")
    a("v_and_b32 v25, 0xffff0000, v24")
    a("v_lshlrev_b32 v24, 16, v24")
    a("v_mul_f32 v24, v24, v34")
    a("v_mul_f32 v25, v25, v34")
    a("v_cvt_pk_bf16_f32 v8, v24, v25")
    stamp(3)
    for t in range(16):
        A = 24 + 4 * (t & 1)
        a(f"v_mov_b32_dpp v9, v8 row_newbcast:{t} {DPP_ALL}")
        for q in range(4):
            a(f"v_perm_b32 v{A+q}, v9, v9, v{16+q}")
        a(f"s_waitcnt vmcnt({16-t})")
        c = "0" if t == 0 else "v[20:23]"
        a(f"v_mfma_f32_16x16x32_bf16 v[20:23], v[{A}:{A+3}], v[{64+4*t}:{67+4*t}], {c}")
    stamp(4)
    wsbase(46, WS_H1, [("s30", 13), ("s57", 11), ("s58", 8)])
    a("L_W:")
    a("s_cmp_eq_u32 s3, 0")
    a("s_cbranch_scc1 L_W0")
    a("s_getreg_b32 s59, hwreg(HW_REG_XCC_ID)")
    a("v_mov_b32 v4, 0")
    a("v_lshlrev_b32 v5, 2, v1")
    a(f"ds_write_b32 v5, v4 offset:{L_Z}")
    a("s_waitcnt lgkmcnt(0)")
    a(f"s_add_u32 s32, s32, {TAGC:#x}")
    a("L_W0:")
    a("s_lshr_b32 s33, s32, 8")
    a("s_lshr_b32 s34, s32, 16")
    a("s_lshr_b32 s35, s32, 24")
    a("v_lshrrev_b32 v4, 5, v1")
    a("v_lshlrev_b32 v5, 4, v4")
    a("v_lshrrev_b32 v12, v5, s32")
    a("v_lshrrev_b32 v13, v5, s33")
    a("v_mov_b32 v14, 0xff")
    a("v_and_b32 v5, 7, v1")
    a("v_lshlrev_b32 v15, 5, v5")
    a("v_and_b32 v5, 16, v1")
    a("v_add_u32 v15, v15, v5")
    a("v_lshl_add_u32 v15, v4, 3, v15")
    a("s_mov_b32 s44, 0x00ff00ff")
    a("s_mov_b32 s45, 0x00ff00ff")
    def half_publish(d, off_reg, base, storer):
        a(f"v_permlane32_swap_b32 v{d}, v{d+2}")
        a(f"v_permlane32_swap_b32 v{d+1}, v{d+3}")
        dpp("v_add_f32", f"v{d}", f"v{d+2}", f"v{d}", "row_ror:8")
        dpp("v_add_f32", f"v{d+1}", f"v{d+3}", f"v{d+1}", "row_ror:8")
        a(f"v_bfi_b32 v{d}, v14, v12, v{d}")
        a(f"v_bfi_b32 v{d+1}, v14, v13, v{d+1}")
        a("s_mov_b64 exec, s[44:45]")
        storer(f"global_store_dwordx2 {off_reg}, v[{d}:{d+1}], {base}")
        a("s_mov_b64 exec, -1")
    a("s_cmp_lg_u32 s3, 0")
    a("s_cbranch_scc1 L_W1")
    half_publish(20, "v15", "s[46:47]", lambda s: a(s + " sc1"))
    stamp(5)
    a("L_W1:")
    masks32(16)
    a("v_and_b32 v5, 31, v1")
    a("v_lshlrev_b32 v6, 4, v5")
    a("v_lshl_add_u32 v7, v4, 11, v6")
    a("v_lshlrev_b32 v8, 3, v5")
    a("v_lshl_add_u32 v8, v4, 2, v8")
    a("s_lshl_b32 s38, s3, 8")
    a("v_add_u32 v8, s38, v8")
    wsbase(46, WS_H1 + 4096, [("s30", 13), ("s3", 9)])
    wsbase(48, WS_XC, [("s30", 9)])
    a("s_barrier")
    stamp(6)
    poll_head("L_p1")
    a("global_load_dwordx4 v[32:35], v7, s[46:47] offset:-4096 sc1")
    a("global_load_dwordx4 v[36:39], v7, s[46:47] sc1")
    a("global_load_dwordx2 v[40:41], v6, s[48:49] sc1")
    a("s_waitcnt vmcnt(0)")
    tagcheck([32, 36], 42, 43)
    a("v_cmp_ne_u32 s[50:51], s32, v41")
    a("s_or_b64 vcc, vcc, s[50:51]")
    a("s_cbranch_vccnz L_p1")
    a("v_pk_add_f32 v[32:33], v[32:33], v[36:37]")
    a("v_pk_add_f32 v[34:35], v[34:35], v[38:39]")
    a("v_cmp_ne_u32 vcc, s59, v40")
    a("v_permlane32_swap_b32 v32, v34")
    a("v_permlane32_swap_b32 v33, v35")
    a("s_cmp_eq_u64 vcc, 0")
    a(f"s_cselect_b32 s37, {0 if P['force_slow'] else 1}, 0")
    a("v_pk_add_f32 v[32:33], v[32:33], v[34:35]")
    a("v_cvt_pk_bf16_f32 v32, v32, v33")
    a(f"ds_write_b32 v8, v32 offset:{L_Q}")
    a("v_mov_b32 v33, s37")
    a(f"v_mov_b32 v34, {L_MODE}")
    a("ds_write_b32 v34, v33")
    a("s_waitcnt lgkmcnt(0)")
    a("s_barrier")
    stamp(7)
    a("v_lshrrev_b32 v4, 4, v1")
    a("v_and_b32 v5, 15, v1")
    a("s_cmp_ge_u32 s31, 16")
    a("s_cbranch_scc1 L_F")
    a("s_and_b32 s40, s31, 3")
    a("s_lshr_b32 s41, s31, 2")
    a("s_lshl_b32 s38, s30, 2")
    a("s_add_u32 s42, s38, s40")
    a("s_lshl_b32 s38, s42, 17")
    a("s_lshl_b32 s39, s3, 15")
    a("s_add_u32 s38, s38, s39")
    a("s_lshl_b32 s39, s41, 8")
    a("s_add_u32 s38, s38, s39")
    a("s_add_u32 s38, s38, 4096")
    a("s_add_u32 s12, s12, s38")
    a("s_addc_u32 s13, s13, 0")
    a("v_lshlrev_b32 v6, 13, v4")
    a("v_lshl_add_u32 v6, v5, 4, v6")
    for i in range(8):
        a(f"global_load_dwordx4 v[{64+4*i}:{67+4*i}], v6, s[12:13] offset:{i*1024-4096} {ldf}")
    wsbase(46, WS_H2, [("s30", 16), ("s40", 14), ("s3", 12)])
    a("v_lshlrev_b32 v7, 6, v5")
    a("v_lshl_add_u32 v7, v4, 4, v7")
    a("v_lshlrev_b32 v8, 5, v5")
    a("v_lshl_add_u32 v8, v4, 4, v8")
    a("s_lshl_b32 s38, s3, 9")
    a("v_add_u32 v8, s38, v8")
    a("v_lshlrev_b32 v9, 4, v1")
    a("v_lshrrev_b32 v10, 3, v1")
    a("v_lshlrev_b32 v10, 12, v10")
    a("v_and_b32 v11, 7, v1")
    a("v_lshl_add_u32 v10, v11, 4, v10")
    wsbase(48, WS_H3, [("s41", 14), ("s42", 7)])
    a("s_barrier")
    a("s_barrier")
    stamp(8)
    G = lambda t, e: 32 + 4 * (2 * t + e)
    poll_head("L_p2")
    for t in range(2):
        for e in range(2):
            r = G(t, e)
            a(f"global_load_dwordx4 v[{r}:{r+3}], v7, s[46:47] offset:{e*2048+t*1024} sc1")
    a("s_waitcnt vmcnt(0)")
    a("v_bitop3_b32 v48, v35, v39, s32 bitop3:0x7e")
    a("v_bitop3_b32 v49, v43, v47, s32 bitop3:0x7e")
    a("v_or_b32 v48, v48, v49")
    a("v_cmp_ne_u32 vcc, 0, v48")
    a("s_cbranch_vccnz L_p2")
    stamp(9)
    a("v_max_f32 v48, v34, v42")
    row_allreduce("v_max_f32", "v48")
    a("v_sub_f32 v50, v34, v48")
    a("v_sub_f32 v52, v42, v48")
    a("v_exp_f32 v50, v50")
    a("v_exp_f32 v52, v52")
    def unpack(t, e):
        r, o = G(t, e), 96 + 8 * t + 4 * e
        a(f"v_lshlrev_b32 v{o}, 16, v{r}")
        a(f"v_and_b32 v{o+1}, 0xffff0000, v{r}")
        a(f"v_lshlrev_b32 v{o+2}, 16, v{r+1}")
        a(f"v_and_b32 v{o+3}, 0xffff0000, v{r+1}")
    a("v_add_f32 v48, v50, v52")
    ctls = ("quad_perm:[1,0,3,2]", "quad_perm:[2,3,0,1]", "row_half_mirror", "row_mirror")
    for k, (t, e) in enumerate([(0, 0), (0, 1), (1, 0), (1, 1)]):
        unpack(t, e)
        dpp("v_add_f32", "v48", "v48", "v48", ctls[k])
    for i in range(0, 8, 2):
        a(f"v_pk_mul_f32 v[{96+i}:{97+i}], v[{96+i}:{97+i}], v[50:51] op_sel_hi:[1,0]")
    a("v_rcp_f32 v48, v48")
    for i in range(0, 8, 2):
        a(f"v_pk_fma_f32 v[{96+i}:{97+i}], v[{104+i}:{105+i}], v[52:53], v[{96+i}:{97+i}] op_sel_hi:[1,0,1]")
    for i in range(4):
        dpp("v_add_f32", f"v{104+i}", f"v{96+i}", f"v{96+i}", "row_mirror", 0x3)
    for i in range(4):
        dpp("v_add_f32", f"v{104+i}", f"v{100+i}", f"v{100+i}", "row_mirror", 0xc)
    for i in range(2):
        dpp("v_add_f32", f"v{96+i}", f"v{104+i}", f"v{104+i}", "row_half_mirror", 0x5)
    for i in range(2):
        dpp("v_add_f32", f"v{96+i}", f"v{106+i}", f"v{106+i}", "row_half_mirror", 0xa)
    for ctl in ctls[:2]:
        for i in range(2):
            dpp("v_add_f32", f"v{96+i}", f"v{96+i}", f"v{96+i}", ctl)
    for i in range(2): a(f"v_mul_f32 v{96+i}, v{96+i}, v48")
    for i in range(2): a(f"v_cvt_pk_bf16_f32 v{96+i}, v{96+i}, v{96+i}")
    def abuild(i):
        A = 24 + 4 * (i & 1)
        for q in range(4):
            dpp("v_and_b32", f"v{A+q}", f"v{96+(i&1)}", f"v{16+q}", f"row_newbcast:{4*(i>>1)}")
    abuild(0)
    for i in range(8):
        if i < 7: abuild(i + 1)
        A = 24 + 4 * (i & 1)
        c = "0" if i == 0 else "v[20:23]"
        a(f"v_mfma_f32_16x16x32_bf16 v[20:23], v[{A}:{A+3}], v[{64+4*i}:{67+4*i}], {c}")
    a("s_mov_b32 exec_hi, 0")
    a(f"ds_write_b128 v8, v[20:23] offset:{L_WO}")
    a("s_waitcnt lgkmcnt(0)")
    a("s_barrier")
    stamp(10)
    a("s_cmp_eq_u32 s3, 1")
    a("s_cbranch_scc1 L_fin")
    a("s_cmp_lg_u32 s3, 0")
    a("s_cbranch_scc1 L_end")
    for w in range(4):
        a(f"ds_read_b128 v[{32+4*w}:{35+4*w}], v9 offset:{L_WO + w*512}")
    a("s_waitcnt lgkmcnt(2)")
    a("v_pk_add_f32 v[32:33], v[32:33], v[36:37]")
    a("v_pk_add_f32 v[34:35], v[34:35], v[38:39]")
    a("s_waitcnt lgkmcnt(0)")
    a("v_pk_add_f32 v[40:41], v[40:41], v[44:45]")
    a("v_pk_add_f32 v[42:43], v[42:43], v[46:47]")
    a("v_pk_add_f32 v[32:33], v[32:33], v[40:41]")
    a("v_pk_add_f32 v[34:35], v[34:35], v[42:43]")
    for i in range(4): a(f"v_bfi_b32 v{32+i}, v14, s{32+i}, v{32+i}")
    a("global_store_dwordx4 v10, v[32:35], s[48:49] sc1")
    stamp(11)
    a("s_branch L_end")
    a("L_fin:")
    a("s_mov_b64 exec, -1")
    a("s_lshr_b32 s40, s31, 3")
    a("s_lshl_b32 s40, s40, 3")
    a("s_add_u32 s40, s40, s30")
    a("s_and_b32 s41, s31, 7")
    wsbase(46, WS_H3, [("s40", 12), ("s41", 4)])
    wsbase(48, WS_H4, [("s40", 14), ("s41", 4)])
    a("s_lshl_b32 s38, s40, 6")
    a("s_lshl_b32 s39, s41, 3")
    a("s_add_u32 s38, s38, s39")
    a("v_bfe_u32 v6, v1, 2, 2")
    a("v_lshl_add_u32 v6, v6, 1, s38")
    a("global_load_ushort v24, v6, s[4:5]")
    a("global_load_ushort v25, v6, s[22:23]")
    a("v_and_b32 v7, 31, v1")
    a("v_lshlrev_b32 v7, 7, v7")
    a("v_lshlrev_b32 v8, 7, v1")
    a("v_min_u32 v9, 47, v1")
    a("v_lshlrev_b32 v9, 7, v9")
    a("v_add_u32 v9, 0x2000, v9")
    a("v_cmp_gt_u32 vcc, 48, v1")
    a("v_cndmask_b32 v26, 0, 1.0, vcc")
    def scatter4(g, o):
        dpp("v_add_f32", f"v{o+1}", f"v{g}", f"v{g}", "row_mirror", 0x3)
        dpp("v_add_f32", f"v{o+2}", f"v{g+1}", f"v{g+1}", "row_mirror", 0x3)
        dpp("v_add_f32", f"v{o+1}", f"v{g+2}", f"v{g+2}", "row_mirror", 0xc)
        dpp("v_add_f32", f"v{o+2}", f"v{g+3}", f"v{g+3}", "row_mirror", 0xc)
        dpp("v_add_f32", f"v{o}", f"v{o+1}", f"v{o+1}", "row_half_mirror", 0x5)
        dpp("v_add_f32", f"v{o}", f"v{o+2}", f"v{o+2}", "row_half_mirror", 0xa)
        dpp("v_add_f32", f"v{o}", f"v{o}", f"v{o}", ctls[0])
        dpp("v_add_f32", f"v{o}", f"v{o}", f"v{o}", ctls[1])
    poll_head("L_p3f")
    a("global_load_dwordx4 v[32:35], v7, s[46:47] sc1")
    a("s_waitcnt vmcnt(0)")
    tagcheck([32], 42, 43)
    a("s_cbranch_vccnz L_p3f")
    scatter4(32, 40)
    a("v_mov_b32 v41, v40")
    a("v_permlane16_swap_b32 v41, v40")
    a("v_add_f32 v40, v40, v41")
    rbf("v40", "v40")
    a("v_lshlrev_b32 v24, 16, v24")
    a("v_lshlrev_b32 v25, 16, v25")
    a("v_add_f32 v40, v40, v24")
    rbf("v24", "v40")
    stamp(11)
    poll_head("L_p4")
    a("global_load_dwordx4 v[32:35], v8, s[48:49] sc1")
    a("global_load_dwordx4 v[36:39], v9, s[48:49] sc1")
    a("s_waitcnt vmcnt(0)")
    tagcheck([32, 36], 42, 43)
    a("s_cbranch_vccnz L_p4")
    stamp(12)
    a("v_pk_fma_f32 v[32:33], v[36:37], v[26:27], v[32:33] op_sel_hi:[1,0,1]")
    a("v_pk_fma_f32 v[34:35], v[38:39], v[26:27], v[34:35] op_sel_hi:[1,0,1]")
    scatter4(32, 40)
    cross_rows("v_add_f32", "v40", "v41")
    rbf("v40", "v40")
    a("v_add_f32 v40, v40, v25")
    rbf("v40", "v40")
    a("v_add_f32 v40, v40, v24")
    a("v_cvt_pk_bf16_f32 v40, v40, v40")
    a("s_mov_b64 exec, 0x1111")
    a("global_store_short v6, v40, s[24:25]")
    a("s_cmp_lg_u32 s2, 0")
    a("s_cbranch_scc1 L_fin_done")
    a("s_mov_b64 exec, 1")
    a("v_mov_b32 v41, 0")
    a("v_mov_b32 v42, s32")
    a("global_store_dword v41, v42, s[28:29] sc1")
    a("L_fin_done:")
    stamp(13)
    if P["amp"] >= 0:
        a(f"s_cmp_lg_u32 s2, {P['ampwg']}")
        a("s_cbranch_scc1 L_end")
        a("s_memrealtime s[92:93]")
        a("s_waitcnt lgkmcnt(0)")
        a(f"s_sub_u32 s38, s{60+2*P['amp']}, s60")
        a("s_mul_i32 s38, s38, 10")
        a("s_min_u32 s38, s38, 100000")
        a("L_amp:")
        a("s_memrealtime s[94:95]")
        a("s_waitcnt lgkmcnt(0)")
        a("s_sub_u32 s39, s94, s92")
        a("s_cmp_lt_u32 s39, s38")
        a("s_cbranch_scc1 L_amp")
    a("s_branch L_end")
    a("L_F:")
    a("s_sub_u32 s40, s31, 16")
    a(f"s_mul_i32 s38, s40, {32*3584}")
    a("s_lshl_b32 s39, s30, 9")
    a("s_add_u32 s38, s38, s39")
    a("s_lshl_b32 s39, s3, 7")
    a("s_add_u32 s38, s38, s39")
    a("s_add_u32 s16, s16, s38")
    a("s_addc_u32 s17, s17, 0")
    a("v_lshrrev_b32 v6, 3, v1")
    a("v_and_b32 v7, 7, v1")
    a(f"v_mul_u32_u24 v8, {4*3584}, v6")
    a("v_lshl_add_u32 v8, v7, 4, v8")
    a(f"v_add_u32 v9, {2*3584}, v8")
    a("s_lshl_b32 s38, s30, 4")
    a("s_add_u32 s41, s38, s40")
    a("s_lshl_b32 s38, s41, 14")
    a("s_lshl_b32 s39, s3, 8")
    a("s_add_u32 s38, s38, s39")
    a("s_add_u32 s20, s20, s38")
    a("s_addc_u32 s21, s21, 0")
    a("v_lshlrev_b32 v10, 12, v4")
    a("v_lshl_add_u32 v10, v5, 4, v10")
    a("v_bfe_u32 v11, v1, 2, 1")
    a("v_lshl_add_u32 v11, v6, 2, v11")
    a("s_lshl_b32 s38, s40, 6")
    a("v_lshl_add_u32 v11, v11, 1, s38")
    a("v_lshrrev_b32 v2, 2, v1")
    a("s_lshl_b32 s38, s41, 5")
    a("v_lshl_add_u32 v2, v2, 1, s38")
    a("v_lshlrev_b32 v3, 7, v7")
    a("v_lshl_add_u32 v3, v6, 4, v3")
    wsbase(46, WS_H3, [("s40", 12)])
    a("v_lshrrev_b32 v6, 1, v7")
    a("v_lshlrev_b32 v6, 12, v6")
    a("v_and_b32 v15, 63, v15")
    a("v_add_u32 v15, v15, v6")
    wsbase(48, WS_H3B, [("s30", 16), ("s3", 14), ("s40", 6)])
    wsbase(50, WS_ST, [("s30", 8)])
    wsbase(52, WS_H3B, [("s30", 16), ("s40", 12)])
    wsbase(54, WS_H4, [("s3", 16), ("s41", 7)])
    a("v_lshlrev_b32 v6, 6, v5")
    a("v_lshl_add_u32 v6, v4, 4, v6")
    a("v_lshlrev_b32 v7, 4, v5")
    a("v_lshrrev_b32 v56, 2, v5")
    a("v_lshlrev_b32 v56, 14, v56")
    a("v_and_b32 v57, 3, v5")
    a("v_lshl_add_u32 v56, v57, 5, v56")
    a("v_lshl_add_u32 v56, v4, 4, v56")
    a("s_lshl_b32 s38, s40, 4")
    a("v_mov_b32 v57, s38")
    for q in range(4): a(f"v_and_b32 v{24+q}, 0x3f803f80, v{16+q}")
    a("s_barrier")
    a("s_barrier")
    a("s_cmp_eq_u32 s30, 7")
    a("s_cbranch_scc1 L_end")
    stamp(8)
    for t in range(4):
        a(f"global_load_dwordx4 v[{64+4*t}:{67+4*t}], v{8+(t>>1)}, s[16:17] offset:{(t&1)*3584} {ldf}")
    a("global_load_ushort v58, v11, s[4:5]")
    a("global_load_ushort v59, v11, s[4:5] offset:4")
    a("global_load_ushort v60, v2, s[18:19]")
    for t in range(4):
        a(f"global_load_dwordx4 v[{80+4*t}:{83+4*t}], v10, s[20:21] offset:{t*1024} {ldf}")
    a("s_waitcnt vmcnt(4)")
    for t in range(4):
        c = "0" if t == 0 else "v[20:23]"
        a(f"v_mfma_f32_16x16x32_bf16 v[20:23], v[24:27], v[{64+4*t}:{67+4*t}], {c}")
    a("v_lshlrev_b32 v58, 16, v58")
    a("v_lshlrev_b32 v59, 16, v59")
    a("v_lshlrev_b32 v60, 16, v60")
    half_publish(20, "v15", "s[48:49] offset:2048", store2)
    stamp(9)
    poll_head("L_p3")
    for t in range(4):
        a(f"global_load_dwordx4 v[{32+4*t}:{35+4*t}], v3, s[46:47] offset:{t*1024} sc1")
    a("s_waitcnt vmcnt(0)")
    tagcheck([32, 36, 40, 44], 48, 49)
    a("s_cbranch_vccnz L_p3")
    stamp(10)
    a("v_pk_add_f32 v[32:33], v[32:33], v[36:37]")
    a("v_pk_add_f32 v[34:35], v[34:35], v[38:39]")
    a("v_pk_add_f32 v[40:41], v[40:41], v[44:45]")
    a("v_pk_add_f32 v[42:43], v[42:43], v[46:47]")
    a("v_pk_add_f32 v[32:33], v[32:33], v[40:41]")
    a("v_pk_add_f32 v[34:35], v[34:35], v[42:43]")
    dpp("v_add_f32", "v36", "v32", "v32", "row_half_mirror", 0x5)
    dpp("v_add_f32", "v37", "v34", "v34", "row_half_mirror", 0x5)
    dpp("v_add_f32", "v36", "v33", "v33", "row_half_mirror", 0xa)
    dpp("v_add_f32", "v37", "v35", "v35", "row_half_mirror", 0xa)
    for ctl in ctls[:2]:
        for i in range(2):
            dpp("v_add_f32", f"v{36+i}", f"v{36+i}", f"v{36+i}", ctl)
    a("v_cvt_pk_bf16_f32 v36, v36, v37")
    a("v_and_b32 v37, 0xffff0000, v36")
    a("v_lshlrev_b32 v36, 16, v36")
    a("v_pk_add_f32 v[36:37], v[36:37], v[58:59]")
    a("v_cvt_pk_bf16_f32 v36, v36, v36")
    a("v_cvt_pk_bf16_f32 v37, v37, v37")
    def abuild1(t):
        A = 24 + 4 * (t & 1)
        for q in range(4):
            ctl = "quad_perm:[0,1,2,3]" if (q >> 1) == (t & 1) else "row_half_mirror"
            dpp("v_and_b32", f"v{A+q}", f"v{36+(t>>1)}", f"v{16+q}", ctl)
    abuild1(0)
    for t in range(4):
        if t < 3: abuild1(t + 1)
        A = 24 + 4 * (t & 1)
        c = "0" if t == 0 else "v[20:23]"
        a(f"v_mfma_f32_16x16x32_bf16 v[20:23], v[{A}:{A+3}], v[{64+4*t}:{67+4*t}], {c}")
    half_publish(20, "v15", "s[48:49]", store2)
    a("s_cmp_lg_u32 s3, 3")
    a("s_cbranch_scc1 L_F1")
    a("v_lshlrev_b32 v36, 16, v36")
    a("v_lshlrev_b32 v37, 16, v37")
    a("v_add_f32 v40, v36, v37")
    dpp("v_add_f32", "v40", "v40", "v40", "row_half_mirror")
    dpp("v_add_f32", "v40", "v40", "v40", "row_mirror")
    cross_rows("v_add_f32", "v40", "v41")
    a("v_mul_f32 v40, 0x3d000000, v40")
    a("v_sub_f32 v36, v36, v40")
    a("v_sub_f32 v37, v37, v40")
    a("v_mul_f32 v41, v36, v36")
    a("v_fmac_f32 v41, v37, v37")
    dpp("v_add_f32", "v41", "v41", "v41", "row_half_mirror")
    dpp("v_add_f32", "v41", "v41", "v41", "row_mirror")
    cross_rows("v_add_f32", "v41", "v42")
    a("v_mov_b32 v42, s32")
    a("v_mov_b32 v43, s32")
    a("s_mov_b64 exec, 1")
    store2("global_store_dwordx4 v57, v[40:43], s[50:51]")
    a("s_mov_b64 exec, -1")
    a("L_F1:")
    stamp(11)
    poll_head("L_p3b")
    a("global_load_dwordx4 v[32:35], v6, s[52:53] sc1")
    a("global_load_dwordx4 v[36:39], v6, s[52:53] offset:2048 sc1")
    a("global_load_dwordx4 v[40:43], v7, s[50:51] sc1")
    a("s_waitcnt vmcnt(0)")
    tagcheck([32, 36], 44, 45)
    a("v_cmp_ne_u32 s[56:57], s32, v43")
    a("s_or_b64 vcc, vcc, s[56:57]")
    a("s_cbranch_vccnz L_p3b")
    stamp(12)
    a("v_mov_b32 v44, v40")
    row_allreduce("v_add_f32", "v44")
    a("v_mul_f32 v44, 0x3d800000, v44")
    a("v_sub_f32 v40, v40, v44")
    rbf("v44", "v44")
    a("v_mul_f32 v40, v40, v40")
    a("v_fmac_f32 v41, 0x42000000, v40")
    a("v_pk_fma_f32 v[32:33], v[36:37], v[44:45], v[32:33] op_sel_hi:[1,0,1] neg_lo:[0,1,0] neg_hi:[0,1,0]")
    a("v_pk_fma_f32 v[34:35], v[38:39], v[44:45], v[34:35] op_sel_hi:[1,0,1] neg_lo:[0,1,0] neg_hi:[0,1,0]")
    row_allreduce("v_add_f32", "v41")
    a("v_mul_f32 v41, 0x3b000000, v41")
    rbf("v41", "v41")
    a(f"v_add_f32 v41, {EPS:#x}, v41")
    rbf("v41", "v41")
    a("v_sqrt_f32 v41, v41")
    scatter4(32, 36)
    rbf("v41", "v41")
    a("v_rcp_f32 v41, v41")
    a("v_mul_f32 v36, v36, v41")
    rbf("v36", "v36")
    a("v_add_f32 v36, v36, v60")
    rbf("v36", "v36")
    a("v_max_f32 v36, 0, v36")
    a("v_mul_f32 v36, v36, v36")
    a("v_cvt_pk_bf16_f32 v36, v36, v36")
    def abuild2(t):
        A = 24 + 4 * (t & 1)
        for q in range(4):
            dpp("v_and_b32", f"v{A+q}", "v36", f"v{16+q}", f"row_newbcast:{4*t}")
    abuild2(0)
    for t in range(4):
        if t < 3: abuild2(t + 1)
        A = 24 + 4 * (t & 1)
        c = "0" if t == 0 else "v[20:23]"
        a(f"v_mfma_f32_16x16x32_bf16 v[20:23], v[{A}:{A+3}], v[{80+4*t}:{83+4*t}], {c}")
    a("s_mov_b32 exec_hi, 0")
    for i in range(4): a(f"v_bfi_b32 v{20+i}, v14, s{32+i}, v{20+i}")
    a("global_store_dwordx4 v56, v[20:23], s[54:55] sc1")
    stamp(13)
    a("L_end:")
    if P["stamps"]:
        a("s_mov_b64 exec, -1")
        a("s_memrealtime s[88:89]")
        a("s_getreg_b32 s90, hwreg(HW_REG_XCC_ID)")
        a("s_waitcnt lgkmcnt(0)")
        a("v_mov_b32 v2, 0")
        for i in range(16): a(f"v_writelane_b32 v2, s{60+2*i}, {i}")
        a("v_writelane_b32 v2, s36, 16")
        a("v_writelane_b32 v2, s37, 17")
        wsbase(46, WS_DBG, [("s2", 10), ("s3", 7)])
        a("v_lshlrev_b32 v3, 2, v1")
        a("s_mov_b32 exec_hi, 0")
        a("global_store_dword v3, v2, s[46:47]")
    a("L_exit:")
    a("s_endpgm")
    body = a.text()
    if P["stamps"]:
        body = "".join(f"    s_mov_b32 s{60+i}, 0\n" for i in range(2, 32, 2)) + "    s_mov_b32 s37, 0\n" + body
    head = open("cdna_kernels/" + NAME + ".s.ref").read().split("; Override launch")[0]
    out = head
    out += f"; @launch grid=(256,1,1) block=(512,1,1) lds={LDS_BYTES}\n"
    out += '.amdgcn_target "amdgcn-amd-amdhsa--gfx950"\n.text\n'
    out += f".globl {NAME}_kernel\n.p2align 8\n.type {NAME}_kernel,@function\n{NAME}_kernel:\n"
    out += body
    out += ".fill 1280, 4, 0xbf800000\n"
    out += f""".section .rodata,"a"
.p2align 6
.amdhsa_kernel {NAME}_kernel
  .amdhsa_next_free_vgpr 128
  .amdhsa_next_free_sgpr 96
  .amdhsa_accum_offset 128
  .amdhsa_group_segment_fixed_size 0
  .amdhsa_kernarg_size 104
  .amdhsa_user_sgpr_count 2
  .amdhsa_user_sgpr_kernarg_segment_ptr 1
  .amdhsa_system_sgpr_workgroup_id_x 1
  .amdhsa_float_denorm_mode_32 3
.end_amdhsa_kernel
"""
    return out, a.nops

if __name__ == "__main__":
    kw = {}
    out = "cdna_kernels/" + NAME + ".s"
    for arg in sys.argv[1:]:
        k, v = arg.split("=", 1)
        if k == "out": out = v
        else: kw[k] = int(v) if v.lstrip("-").isdigit() else v
    txt, nops = gen(**kw)
    open(out, "w").write(txt)
    print("wrote", out, "auto nop states:", nops)
```
